```python
import torch

def _softmax(x, axis=-1):
    return torch.softmax(x, dim=axis)

def _gelu(x):
    return torch.nn.functional.gelu(x, approximate='tanh')

def _silu(x):
    return torch.nn.functional.silu(x)

def _sigmoid(x):
    return torch.sigmoid(x)

def _layernorm(x, axis=-1, eps=1e-05):
    m = x.mean(dim=axis, keepdim=True)
    v = x.var(dim=axis, keepdim=True, unbiased=False)
    return (x - m) / torch.sqrt(v + eps)

def _scatter_add(tgt, idx, src, axis=0):
    return tgt.clone().index_add_(axis, idx, src)

def _segment_sum(src, seg, n):
    out = torch.zeros((n,) + src.shape[1:], dtype=src.dtype)
    return out.index_add_(0, seg, src)

def _pad(x, pw):
    flat = tuple((v for pair in reversed(pw) for v in pair))
    return torch.nn.functional.pad(x, flat)
kernel_name = 'interleave_layers__memory_aug_recurrent_mem_tr__spectral_gfnet__prompt'

def setup_inputs():

    _w = lambda a: (lambda t: t.to(torch.bfloat16) if t.is_floating_point() else t)(torch.as_tensor(a))

    def _A_setup():
        B, S, Dm = (1, 2048, 576)
        H, Dh = (32, 128)
        M, seg = (8, 32)
        seg = min(seg, S)
        S = S // seg * seg
        return {'x': _w((lambda *s: torch.randn(*s, dtype=torch.bfloat16) * 0.05)(B, S, Dm)), 'mem0': _w((lambda *s: torch.randn(*s, dtype=torch.bfloat16) * 0.2)(B, M, Dm)), 'Wq': _w((lambda *s: torch.randn(*s, dtype=torch.bfloat16) * 1.6)(Dm, H, Dh) * Dm ** (-0.5)), 'Wk': _w((lambda *s: torch.randn(*s, dtype=torch.bfloat16) * 1.6)(Dm, H, Dh) * Dm ** (-0.5)), 'Wv': _w((lambda *s: torch.randn(*s, dtype=torch.bfloat16) * 0.2)(Dm, H, Dh) * Dm ** (-0.5)), 'Wo': _w((lambda *s: torch.randn(*s, dtype=torch.bfloat16) * 0.2)(H, Dh, Dm) * (H * Dh) ** (-0.5)), 'seg_len': seg}
    _A_in = _A_setup()

    def _B_setup():
        B, S, D = (1, 2048, 576)
        Df = D // 2 + 1
        return {'x': _w((lambda *s: torch.randn(*s, dtype=torch.bfloat16) * 0.05)(B, S, D)), 'w_r': _w((lambda *s: torch.randn(*s, dtype=torch.bfloat16) * 0.4)(S, Df) * 0.02), 'w_i': _w((lambda *s: torch.randn(*s, dtype=torch.bfloat16) * 0.4)(S, Df) * 0.02)}
    _B_in = _B_setup()
    return {'A_x': _A_in['x'], 'A_mem0': _A_in['mem0'], 'A_Wq': _A_in['Wq'], 'A_Wk': _A_in['Wk'], 'A_Wv': _A_in['Wv'], 'A_Wo': _A_in['Wo'], 'A_seg_len': _A_in['seg_len'], 'B_x': _B_in['x'], 'B_w_r': _B_in['w_r'], 'B_w_i': _B_in['w_i']}

def reference(A_x, A_mem0, A_Wq, A_Wk, A_Wv, A_Wo, A_seg_len, B_x, B_w_r, B_w_i):

    def _A_ref(x, mem0, Wq, Wk, Wv, Wo, seg_len):
        B, S, Dm = x.shape
        H, Dh = (Wq.shape[1], Wq.shape[2])
        M = mem0.shape[1]
        scale = Dh ** (-0.5)
        n_seg = S // seg_len
        L = M + seg_len
        idx = torch.arange(L)
        mask = (idx[:, None] < M) | (idx[:, None] >= idx[None, :])
        mem = mem0
        outs = []
        for s in range(n_seg):
            xs = x[:, s * seg_len:(s + 1) * seg_len, :].clone()
            h = torch.concatenate([mem, xs], axis=1)
            q = torch.einsum('btd,dhe->bhte', h, Wq)
            k = torch.einsum('btd,dhe->bhte', h, Wk)
            v = torch.einsum('btd,dhe->bhte', h, Wv)
            scores = torch.einsum('bhqe,bhke->bhqk', q, k) * scale
            scores = torch.where(mask[None, None], scores, -1000000000.0)
            p = _softmax(scores, axis=-1)
            o = torch.einsum('bhqk,bhke->bhqe', p, v)
            o = torch.einsum('bhte,hed->btd', o, Wo)
            mem = o[:, :M, :].clone()
            outs.append(o[:, M:, :])
        return torch.concatenate(outs, axis=1)

    def _B_ref(x, w_r, w_i):
        B, S, D = x.shape
        X = (lambda x, axes=(-2, -1): torch.fft.rfft2(x.float(), dim=axes))(x, axes=(-2, -1))
        W = w_r + 1j * w_i
        X = X * W
        y = (lambda x, s, axes=(-2, -1): torch.fft.irfft2(x, s=s, dim=axes).to(torch.bfloat16))(X, (S, D), axes=(-2, -1))
        return y
    x = A_x
    x = x + _A_ref(_layernorm(x, axis=-1), A_mem0, A_Wq, A_Wk, A_Wv, A_Wo, A_seg_len)
    x = x + _B_ref(_layernorm(x, axis=-1), B_w_r, B_w_i)
    x = x + _A_ref(_layernorm(x, axis=-1), A_mem0, A_Wq, A_Wk, A_Wv, A_Wo, A_seg_len)
    x = x + _B_ref(_layernorm(x, axis=-1), B_w_r, B_w_i)
    return x
```

```python
import re

def v(n, c=1):
    return f"v{n}" if c == 1 else f"v[{n}:{n+c-1}]"
def a(n, c=1):
    return f"a{n}" if c == 1 else f"a[{n}:{n+c-1}]"
def s(n, c=1):
    return f"s{n}" if c == 1 else f"s[{n}:{n+c-1}]"

_REG = re.compile(r"^(-|\|)?(abs\()?([vas])(\d+|\[(\d+):(\d+)\])\)?\|?$")

def regs_of(tok):
    tok = tok.strip()
    if tok in ("vcc",):
        return {("s", 106), ("s", 107)}
    if tok == "vcc_lo":
        return {("s", 106)}
    if tok == "vcc_hi":
        return {("s", 107)}
    if tok == "exec":
        return {("s", 126), ("s", 127)}
    if tok == "m0":
        return {("s", 124)}
    m = _REG.match(tok)
    if not m:
        return set()
    f = m.group(3)
    if m.group(5) is not None:
        return {(f, i) for i in range(int(m.group(5)), int(m.group(6)) + 1)}
    return {(f, int(m.group(4)))}

TRANS = ("v_exp_f32", "v_log_f32", "v_rcp_f32", "v_rsq_f32", "v_sqrt_f32", "v_sin_f32", "v_cos_f32", "v_rcp_iflag_f32")

class Ins:
    __slots__ = ("text", "op", "kind", "wr", "rd", "srcA", "srcB", "srcC", "passes", "label", "target", "ws", "dpp", "wide_store")
    def __init__(self, text):
        self.text = text
        t = text.split(";")[0].strip()
        self.label = None; self.target = None
        self.kind = "other"; self.wr = set(); self.rd = set()
        self.srcA = self.srcB = self.srcC = set(); self.passes = 0; self.ws = 1; self.dpp = False
        self.wide_store = set()
        if not t or t.startswith("."):
            self.kind = "dir"; self.ws = 0; self.op = ""; return
        if t.endswith(":"):
            self.kind = "label"; self.label = t[:-1]; self.ws = 0; self.op = ""; return
        parts = t.split(None, 1)
        op = parts[0]; self.op = op
        rest = parts[1] if len(parts) > 1 else ""
        ops = [x.strip() for x in re.split(r",(?![^\[]*\])", rest)] if rest else []
        mods = ""
        if ops:
            sp = ops[-1].split(None, 1)
            ops[-1] = sp[0]
            mods = sp[1] if len(sp) > 1 else ""
        R = [regs_of(x) for x in ops]
        if op == "s_nop":
            self.kind = "nop"; self.ws = int(ops[0], 0) + 1; return
        if op.startswith("s_cbranch") or op == "s_branch":
            self.kind = "branch"; self.target = ops[0]; return
        if op == "s_endpgm":
            self.kind = "end"; return
        if op.startswith("v_mfma"):
            self.kind = "mfma"; self.wr = R[0]; self.srcA = R[1]; self.srcB = R[2]; self.srcC = R[3]
            self.rd = R[1] | R[2] | R[3]
            self.passes = 8 if "32x32" in op else 4
            return
        if op.startswith("v_smfmac"):
            self.kind = "mfma"; self.wr = R[0]; self.srcA = R[1]; self.srcB = R[2] | R[3]; self.srcC = R[0]
            self.rd = R[0] | R[1] | R[2] | R[3]
            self.passes = 8 if "32x32" in op else 4
            return
        if op.startswith("v_"):
            self.kind = "valu"
            if "dpp" in op or "row_" in mods or "quad_perm" in mods:
                self.dpp = True
            if op.startswith("v_permlane") and "swap" in op:
                self.wr = R[0] | R[1]; self.rd = R[0] | R[1]; return
            if op.startswith("v_cmp"):
                self.wr = R[0]; self.rd = set().union(*R[1:])
                if op.startswith("v_cmpx"):
                    self.wr |= {("s", 126), ("s", 127)}
                return
            if op.startswith(("v_add_co", "v_sub_co", "v_addc_co", "v_subb_co", "v_subrev_co")):
                self.wr = R[0] | R[1]; self.rd = set().union(*R[2:]); return
            self.wr = R[0]; self.rd = set().union(*R[1:]) if len(R) > 1 else set()
            if op.startswith(("v_fmac", "v_mac", "v_dot2c", "v_pk_fmac")) or self.dpp or op.startswith("v_writelane"):
                self.rd |= R[0]
            if op.startswith("v_cndmask") and len(ops) == 3:
                self.rd |= {("s", 106), ("s", 107)}
            return
        if op.startswith("ds_"):
            self.kind = "ds"
            if op.startswith(("ds_read", "ds_bpermute", "ds_permute", "ds_swizzle")):
                self.wr = R[0]; self.rd = set().union(*R[1:])
            else:
                self.rd = set().union(*R)
            return
        if op.startswith(("buffer_", "global_")):
            self.kind = "vmem"
            allmods = rest
            if op in ("buffer_inv", "buffer_wbl2"):
                return
            if "load" in op and (" lds" in (" " + mods) or "_lds_" in op):
                self.rd = set().union(*R) | {("s", 124)}
                self.kind = "vmemlds"
            elif "load" in op:
                self.wr = R[0]; self.rd = set().union(*R[1:])
            elif "atomic" in op:
                self.rd = set().union(*R)
                if "sc0" in mods:
                    self.wr = R[0]
            else:
                self.rd = set().union(*R)
                if op.endswith(("x3", "x4")):
                    self.wide_store = R[0] if op.startswith("buffer_") else R[1]
            return
        if op.startswith("s_"):
            self.kind = "salu"
            if op.startswith(("s_cmp", "s_waitcnt", "s_barrier", "s_sleep", "s_setprio", "s_bitcmp")):
                self.rd = set().union(*R) if R else set()
            else:
                self.wr = R[0] if R else set()
                self.rd = set().union(*R[1:]) if len(R) > 1 else set()
                if "saveexec" in op:
                    self.wr |= {("s", 126), ("s", 127)}
            return

def vg(x):
    return {r for r in x if r[0] in "va"}
def sg(x):
    return {r for r in x if r[0] == "s"}

def need(p, c):
    n = 0
    if p.kind == "valu":
        pw = vg(p.wr); ps = sg(p.wr)
        if c.kind == "mfma" and pw & c.rd: n = max(n, 2)
        if c.kind == "valu":
            if c.dpp and pw & c.rd: n = max(n, 2)
            if c.op.startswith("v_permlane") and pw & c.rd: n = max(n, 2)
            if c.op.startswith(("v_readfirstlane", "v_readlane")) and pw & c.rd: n = max(n, 1)
            if p.op in TRANS and pw & c.rd: n = max(n, 1)
            if ps & c.rd:
                n = max(n, 4 if c.op.startswith(("v_readlane", "v_writelane")) else 2)
            if ("s", 126) in ps:
                if c.dpp: n = max(n, 5)
                if c.op.startswith(("v_readfirstlane", "v_readlane", "v_writelane", "v_permlane")): n = max(n, 4)
        if c.kind == "mfma" and ("s", 126) in ps: n = max(n, 4)
        if c.kind in ("vmem", "vmemlds") and ps & c.rd: n = max(n, 5)
        if c.kind == "salu" and ps & c.rd: n = max(n, 1)
    if p.kind == "salu":
        if ("s", 124) in p.wr and c.kind == "vmemlds": n = max(n, 1)
    if p.kind == "mfma":
        big = {4: 8, 8: 12}[p.passes]
        ov = {4: 6, 8: 10}[p.passes]
        war = {4: 3, 8: 7}[p.passes]
        if c.kind == "mfma":
            if p.wr & (c.srcA | c.srcB): n = max(n, big)
            if p.wr & c.srcC:
                if not (p.wr == c.srcC and p.passes == c.passes): n = max(n, ov)
            elif p.wr & c.wr: n = max(n, ov)
        elif c.kind in ("valu", "ds", "vmem", "vmemlds"):
            if p.wr & (c.rd | c.wr): n = max(n, big)
            if c.kind == "valu" and p.srcC & c.wr: n = max(n, war)
    if p.wide_store and c.kind in ("valu", "mfma") and p.wide_store & c.wr: n = max(n, 2)
    if p.wide_store and c.kind in ("ds", "vmem") and p.wide_store & c.wr: n = max(n, 1)
    return n

class Asm:
    def __init__(self):
        self.ins = []
        self.uid = 0
        self.padded = 0
        self.relax = False
    def __call__(self, text):
        for line in text.split("\n"):
            line = line.strip()
            if line:
                self._emit(Ins(line))
    def raw(self, text):
        i = Ins(""); i.text = text; self.ins.append(i)
    def _emit(self, i):
        if i.kind not in ("dir", "label", "nop"):
            d = 0; req = 0; nm = 0
            for p in reversed(self.ins):
                if p.kind == "end" or p.op == "s_branch":
                    break
                if d >= 20: break
                if p.kind not in ("dir", "label", "nop"):
                    r = need(p, i) - d
                    if p.kind == "mfma" and p.passes == 4 and nm >= 3 and self.relax: r = 0
                    req = max(req, r)
                    if p.kind == "mfma": nm += 1
                d += p.ws
            if req > 0:
                self.padded += req
                while req > 0:
                    k = min(req, 16)
                    self.ins.append(Ins(f"s_nop {k-1}"))
                    req -= k
        self.ins.append(i)
    def label(self, name):
        self(f"{name}:")
    def newlabel(self, base):
        self.uid += 1
        return f"L_{base}_{self.uid}"
    def check_branches(self):
        pos = {i.label: k for k, i in enumerate(self.ins) if i.kind == "label"}
        bad = []
        for k, b in enumerate(self.ins):
            if b.kind != "branch": continue
            if b.target not in pos:
                bad.append(f"missing label {b.target}"); continue
            prods = []; d = 1
            for p in reversed(self.ins[:k]):
                if d >= 20 or p.kind == "end" or p.op == "s_branch": break
                if p.kind not in ("dir", "label", "nop"): prods.append((p, d))
                d += p.ws
            d2 = 0
            for c in self.ins[pos[b.target]:]:
                if d2 >= 20: break
                if c.kind not in ("dir", "label", "nop"):
                    for p, dp in prods:
                        if need(p, c) > dp + d2:
                            bad.append(f"hazard across branch {b.text}: {p.text} -> {c.text}")
                if c.kind == "end" or c.op == "s_branch": break
                d2 += c.ws
        return bad
    def text(self):
        out = []
        for i in self.ins:
            if i.kind == "label" or i.kind == "dir":
                out.append(i.text)
            else:
                out.append("    " + i.text)
        return "\n".join(out) + "\n"

def align_pass(A, wrap):
    import subprocess, tempfile, os
    d = tempfile.mkdtemp()
    open(d + "/a.s", "w").write(wrap(A.text()))
    subprocess.run(["clang", "-x", "assembler", "-target", "amdgcn-amd-amdhsa", "-mcpu=gfx950", "-c", d + "/a.s", "-o", d + "/a.o"], check=True)
    out = subprocess.run(["llvm-objdump", "-d", "--mcpu=gfx950", d + "/a.o"], capture_output=True, text=True).stdout
    sizes = []
    for line in out.splitlines():
        m = re.search(r"// [0-9A-F]{12}: ((?:[0-9A-F]{8} ?)+)", line)
        if m: sizes.append(4 * len(m.group(1).split()))
    real = [i for i in A.ins if i.kind not in ("dir", "label")]
    assert len(real) == len(sizes), (len(real), len(sizes))
    NO = ("v_readfirstlane", "v_readlane", "v_nop", "v_fmamk", "v_fmaak", "v_cmpx")
    INF = 1 << 30
    cost = [0, INF]; back = []
    for ins, sz in zip(real, sizes):
        w = 2 if ins.kind == "valu" else 1
        opts = [(sz, False)]
        if sz == 4 and ins.kind == "valu" and not ins.dpp and not ins.op.startswith(NO) and not ins.op.endswith("_e64"):
            opts.append((8, True))
        nc = [INF, INF]; nb = [None, None]
        for par in (0, 1):
            if cost[par] >= INF: continue
            for s_, pr in opts:
                c = cost[par] * 1 + (w * 8 if (s_ == 8 and par) else 0) + (1 if pr else 0)
                q = par ^ ((s_ // 4) & 1)
                if c < nc[q]: nc[q] = c; nb[q] = (par, pr)
        cost = nc; back.append(nb)
    par = 0 if cost[0] <= cost[1] else 1
    n = 0
    for ins, nb in zip(reversed(real), reversed(back)):
        pp, pr = nb[par]
        if pr:
            ins.text = ins.text.replace(ins.op, ins.op + "_e64", 1); n += 1
        par = pp
    return n
```

```python
from common import *
import math, struct

def f2u(x):
    return struct.unpack("<I", struct.pack("<f", x))[0]

L_M = 0
L_QKX = 9216
L_ZX = L_QKX + 4608
L_KX = 16384
L_W = 24576
ROWP = 288

sH, sL, sS, sMsrc, sKx, sVx, sW64, sRed, sKl, sMr, sMdW, sFlag, sIsRed, sWb, sFive, sPA, sPB = range(41, 58)
sMaskLo = 58
sSel = 60
sNC1 = 68
sPar = 69
sU = 70
sPiece = 71
sBlk0 = 72
sT = 73
sC1 = 78
sStamp = 80
sPB0 = 4
sRB0 = 5
sU7 = 6
sN = 7
sHalf = 30
sOnes = 34
sFl = 3
sMpo = 37
sClr = 38
sCl0 = 36
sPS = 16
sArc = 39
sOwn = 23
sFlN = 24
FAR = 0x70000000

WOK = "LLLLRRRRRRLLLRRRLLLL"
def QK1(t): return a(16 * (t - 4), 8)
def QK2(t): return a(16 * (t - 4) + 8, 8)
def VW(p, par): return v(112 + 16 * p + 8 * par, 8)
def WoR(i): return (a, 224 + 8 * i) if i < 4 else (v, 72 + 8 * (i - 4))

def chain_setup(A):
    A(f"s_mov_b32 {s(sH)}, {s(S_ROLE)}")
    A(f"s_load_dwordx8 s[80:87], s[0:1], {KA_WQ}")
    A("v_and_b32 v12, 15, v0")
    A("v_lshrrev_b32 v13, 4, v0")
    A("v_and_b32 v14, 7, v0")
    A(f"s_lshl_b32 {s(sT)}, {s(sH)}, 8")
    A(f"s_lshl_b32 {s(sW64)}, {s(S_WAVE)}, 6")
    A(f"s_add_u32 {s(sT)}, {s(sT)}, {s(sW64)}")
    A("v_lshlrev_b32 v15, 15, v13")
    A(f"v_lshl_add_u32 v15, v12, 2, v15")
    A(f"v_add_u32 v15, {s(sT)}, v15")
    A(f"s_mov_b32 {s(sPA)}, 0x05040100")
    A(f"s_mov_b32 {s(sPB)}, 0x07060302")
    A(f"s_mul_i32 {s(sBlk0)}, {s(S_WAVE)}, 5")
    A(f"s_lshl_b32 {s(sT)}, {s(S_WAVE)}, 2")
    A(f"s_add_u32 {s(sT)}, {s(sT)}, 2")
    A(f"s_cmp_lt_u32 {s(S_WAVE)}, 2")
    A(f"s_cselect_b32 {s(sBlk0)}, {s(sBlk0)}, {s(sT)}")
    A(f"s_cselect_b32 {s(sFive)}, 1, 0")
    A("v_lshlrev_b32 v6, 4, v0")
    A(f"s_lshl_b32 {s(sT)}, {s(sBlk0)}, 2")
    A(f"s_sub_u32 {s(sT)}, {s(sT)}, {s(S_WAVE)}")
    A(f"s_lshl_b32 {s(sT)}, {s(sT)}, 11")
    A(f"s_add_u32 {s(sWb)}, {s(sT)}, {L_W}")
    A(f"v_add_u32 v7, {s(sWb)}, v6")
    A("s_waitcnt lgkmcnt(0)")
    for i, d in enumerate((S_A, S_B, S_C, S_D)):
        build_srd(A, d, 80 + 2 * i, 576 * 4096 * 2)

def chain_weights(A):
    vq = Q(A, "vmcnt", 63)
    slots = [0] + [L_W + 2048 * k for k in (0, 19, 38, 53)]
    NS = len(slots)
    jobs = [("qk", t) for t in range(4, 18)] + [("v", p) for p in range(9)] + [("qk", t) for t in range(4)]
    A(f"s_cmp_ge_u32 {s(S_WAVE)}, 2")
    A(f"s_cselect_b32 {s(S_A)}, {s(S_B)}, {s(S_A)}")
    A(f"s_cselect_b32 {s(S_A+1)}, {s(S_B+1)}, {s(S_A+1)}")
    A("v_lshlrev_b32 v8, 13, v13")
    A("v_lshl_add_u32 v8, v12, 4, v8")
    A(f"s_lshl_b32 {s(sT)}, {s(sH)}, 8")
    A(f"s_lshl_b32 {s(sT+1)}, {s(S_WAVE)}, 17")
    A(f"s_add_u32 {s(sT+1)}, {s(sT+1)}, {s(sT)}")
    A(f"v_add_u32 v9, {s(sT+1)}, v8")
    A(f"s_and_b32 {s(sT+1)}, {s(sT+1)}, 0x3ffff")
    A(f"v_add_u32 v8, {s(sT+1)}, v8")
    A(f"s_lshl_b32 {s(sT+4)}, {s(S_WAVE)}, 12")
    A("v_lshlrev_b32 v10, 10, v13")
    A("v_lshl_add_u32 v10, v12, 2, v10")
    A(f"v_add_u32 v10, {s(sW64)}, v10")
    def dma(n):
        kind, t = jobs[n]
        for i in range(4):
            row = (32 * t if kind == "qk" else 64 * t) + 4 * i
            A(f"s_mov_b32 {s(sT)}, {row * 8192:#x}")
            A(f"s_add_u32 m0, {s(sT+4)}, {slots[n % NS] + 1024 * i}")
            if kind == "qk": A(f"buffer_load_dwordx4 v8, {s(S_A,4)}, {s(sT)} offen lds")
            else: A(f"buffer_load_dwordx4 v9, {s(S_C,4)}, {s(sT)} offen lds")
            vq.push(("c", n))
    def take(n):
        kind, t = jobs[n]
        A(f"v_add_u32 v11, {slots[n % NS]}, v10")
        for j in range(0, 16, 2):
            r = 32 * (j >> 3) + 16 * ((j >> 2) & 1) + (j & 3)
            A(f"ds_read2st64_b32 {v(96+j,2)}, v11 offset0:{r} offset1:{r+1}")
        A("s_waitcnt lgkmcnt(0)")
        for j in range(8):
            q, k = 96 + j, 104 + j
            if kind == "qk" and t >= 4:
                A(f"v_perm_b32 v1, {v(k)}, {v(q)}, {s(sPA)}")
                A(f"v_perm_b32 v2, {v(k)}, {v(q)}, {s(sPB)}")
                A(f"v_accvgpr_write_b32 {a(16*(t-4)+j)}, v1")
                A(f"v_accvgpr_write_b32 {a(16*(t-4)+8+j)}, v2")
            elif kind == "qk":
                A(f"v_perm_b32 {v(16+16*t+j)}, {v(k)}, {v(q)}, {s(sPA)}")
                A(f"v_perm_b32 {v(24+16*t+j)}, {v(k)}, {v(q)}, {s(sPB)}")
            else:
                A(f"v_perm_b32 {v(112+16*t+j)}, {v(k)}, {v(q)}, {s(sPA)}")
                A(f"v_perm_b32 {v(120+16*t+j)}, {v(k)}, {v(q)}, {s(sPB)}")
    A("v_and_b32 v3, 3, v0")
    A("v_mul_u32_u24 v3, 1152, v3")
    A("v_lshrrev_b32 v2, 2, v0")
    A("v_lshl_add_u32 v3, v2, 2, v3")
    A("v_mul_u32_u24 v4, 4608, v13")
    A("v_lshl_add_u32 v4, v12, 2, v4")
    A(f"s_mul_i32 {s(sT+2)}, {s(sH)}, 147456")
    A(f"s_lshl_b32 {s(sT)}, {s(sBlk0)}, 6")
    A(f"s_add_u32 {s(sT+2)}, {s(sT+2)}, {s(sT)}")
    A(f"s_add_u32 {s(sT+3)}, {s(sWb)}, 16384")
    def wo(o):
        b, t = divmod(o, 4)
        if WOK[o] == "R":
            f, r = WoR(WOK[:o].count("R"))
            for j in range(8):
                row = 32 * t + 16 * (j >> 2) + (j & 3)
                A(f"s_add_u32 {s(sT)}, {s(sT+2)}, {row * 1152 + 64 * b}")
                A(f"buffer_load_dword {f(r + j)}, v4, {s(S_D,4)}, {s(sT)} offen"); vq.push("w")
        else:
            li = WOK[:o].count("L")
            for hf in range(2):
                for gb in range(4):
                    row = 32 * t + 16 * hf + 4 * gb
                    A(f"s_add_u32 {s(sT)}, {s(sT+2)}, {row * 1152 + 64 * b}")
                    A(f"s_add_u32 m0, {s(sT+3)}, {li * 2048 + hf * 1024 + gb * 256}")
                    A(f"buffer_load_dword v3, {s(S_D,4)}, {s(sT)} offen lds"); vq.push("w")
    lastops = [o for o in range(16) if WOK[o] == "R" and WOK[:o].count("R") in (4, 7, 8)]
    early = [o for o in range(16) if o not in lastops]
    A("s_barrier")
    for n in range(NS - 1):
        dma(n)
    sk = A.newlabel("wo4")
    A(f"s_cmp_eq_u32 {s(sFive)}, 0")
    A(f"s_cbranch_scc1 {sk}")
    keep = list(vq.tags)
    for o in range(16, 20): wo(o)
    A.label(sk)
    vq.tags = keep
    for n in range(len(jobs)):
        vq.wait(("c", n))
        A("s_barrier")
        if n + NS - 1 < len(jobs): dma(n + NS - 1)
        if n >= 3 and n % 2 == 1 and early: wo(early.pop(0))
        if n == 4 and early: wo(early.pop(0))
        take(n)
    assert not early
    A("s_barrier")
    for i in range(16):
        A(f"ds_write_b128 v7, {v(16+4*i,4)} offset:{1024*i}")
    A("s_waitcnt lgkmcnt(0)")
    for o in lastops: wo(o)

def moff(A, d, t):
    return [f"v_and_b32 {v(d)}, 0x70, v6", f"v_bfe_u32 {v(t)}, v6, 8, 1", f"v_lshl_add_u32 {v(d)}, {v(t)}, 3, {v(d)}",
            f"v_lshrrev_b32 {v(t)}, 9, v6", f"v_lshl_add_u32 {v(d)}, {v(t)}, 2, {v(d)}"]

def chain_consts(A, exp=""):
    A("v_cmp_gt_u32 vcc, 8, v12")
    A(f"s_mov_b64 {s(sMaskLo,2)}, vcc")
    A("v_mov_b32 v1, 0xdddddddd")
    A("v_mov_b32 v2, 0x88888888")
    A("v_cndmask_b32 v1, v1, v2, vcc")
    A("v_lshlrev_b32 v2, 7, v13")
    A("v_lshl_add_u32 v2, v14, 4, v2")
    A(f"v_mul_u32_u24 v3, {ROWP}, v12")
    A("v_lshl_add_u32 v3, v13, 4, v3")
    A("v_mul_u32_u24 v4, 1152, v13")
    A("v_lshl_add_u32 v4, v12, 2, v4")
    A(f"s_add_u32 {s(sT+1)}, {s(sW64)}, {L_QKX}")
    A(f"v_add_u32 v4, {s(sT+1)}, v4")
    A("v_lshrrev_b32 v16, 3, v12")
    A("v_lshl_add_u32 v5, v16, 9, v2")
    for x in moff(A, 24, 25): A(x)
    A(f"s_mul_i32 {s(sPiece)}, {s(S_WAVE)}, 2304")
    A("v_lshrrev_b32 v18, 1, v14")
    for k in range(4):
        A(f"v_cmp_eq_u32 {s(sSel+2*k,2)}, {k}, v18")
    c1 = 128 ** -0.5 * math.log2(math.e)
    A(f"s_mov_b32 {s(sC1)}, {f2u(c1):#x}")
    A(f"s_mov_b32 {s(sC1+1)}, {f2u(c1):#x}")
    A(f"s_mov_b32 {s(sNC1)}, {f2u(-c1):#x}")
    A(f"s_lshl_b32 {s(sU)}, {s(sH)}, 1")
    A(f"s_add_u32 {s(sU)}, {s(sU)}, {s(S_WAVE)}")
    A(f"s_sub_u32 {s(sU)}, {s(sU)}, 2")
    A(f"s_add_u32 {s(sT)}, {s(sH)}, 64")
    A(f"s_cmp_ge_u32 {s(S_WAVE)}, 2")
    A(f"s_cselect_b32 {s(sU)}, {s(sU)}, {s(sT)}")
    A(f"s_cselect_b32 {s(sIsRed)}, 1, 0")
    A(f"s_cmp_lt_u32 {s(sH)}, 8")
    A(f"s_cselect_b32 {s(sT)}, 1, 0")
    A(f"s_cmp_eq_u32 {s(S_WAVE)}, 1")
    A(f"s_cselect_b32 {s(sT)}, {s(sT)}, 0")
    A(f"s_or_b32 {s(sIsRed)}, {s(sIsRed)}, {s(sT)}")
    A(f"s_mov_b32 {s(sOnes)}, 0x3f803f80")
    A(f"s_mov_b32 {s(sOnes+1)}, 0x3f803f80")
    A(f"s_mov_b32 {s(sHalf)}, 0x3f003f00")
    A(f"s_mov_b32 {s(sHalf+1)}, 0x3f003f00")
    A(f"s_mov_b32 {s(sN)}, 0")
    A(f"s_lshl_b32 {s(sU7)}, {s(sU)}, 7")
    A(f"s_lshl_b32 {s(sRB0)}, {s(sU)}, 12")
    A(f"s_add_u32 {s(sRB0)}, {s(sRB0)}, {PART:#x}")
    A(f"s_lshl_b32 {s(sT)}, {s(sH)}, 7")
    A(f"s_lshl_b32 {s(sPB0)}, {s(sBlk0)}, 14")
    A(f"s_add_u32 {s(sPB0)}, {s(sPB0)}, {s(sT)}")
    A(f"s_add_u32 {s(sPB0)}, {s(sPB0)}, {PART:#x}")
    A(f"s_mov_b32 {s(sFlN)}, 1")
    A(f"s_cmp_eq_u32 {s(sIsRed)}, 0")
    A(f"s_cselect_b32 {s(sOwn)}, {FAR:#x}, 0")
    A(f"s_add_u32 {s(sU7)}, {s(sU7)}, {s(sOwn)}")
    A(f"s_add_u32 {s(sU7)}, {s(sU7)}, {MCH:#x}")
    A(f"s_lshl_b32 {s(sKl)}, {s(S_WAVE)}, 10")
    A(f"s_add_u32 {s(sKl)}, {s(sKl)}, {L_KX}")

def chain_touch(A):
    sk = A.newlabel("nopo")
    A(f"s_cmp_eq_u32 {s(sIsRed)}, 0")
    A(f"s_cbranch_scc1 {sk}")
    A(f"s_mov_b32 {s(sT)}, {s(sRB0)}")
    for sl in range(2):
        for i in range(4):
            A(f"buffer_load_dwordx4 v[20:23], v6, {s(S_WS,4)}, {s(sT)} offen offset:{1024*i} sc1")
        A(f"s_add_u32 {s(sT)}, {s(sT)}, {PSLOT}")
    A(f"s_mov_b32 {s(sT)}, {s(sU7)}")
    for sl in range(4):
        A(f"buffer_load_dword v20, v24, {s(S_WS,4)}, {s(sT)} offen sc1")
        A(f"s_add_u32 {s(sT)}, {s(sT)}, {MENT}")
    A.label(sk)

def chain_loop(A, sc, tag, diag=False, nlayers=2, exp=""):
    ex = exp.split(",")
    def par(name, dflt):
        return int(next((x[len(name):] for x in ex if x.startswith(name) and x[len(name):].isdigit()), dflt))
    lq = Q(A, "lgkmcnt", 15); vq = Q(A, "vmcnt", 63)
    L_layer, L_top = f"L_c{tag}_layer", f"L_c{tag}_top"
    nst = [0]
    ool = []
    SEG = 0 if "samekv" in ex else 32 * 8192
    def stamp(name="std"):
        if diag and (("@" + name) in ex or name == "top"):
            A(f"{'s_memrealtime' if 'rt' in ex else 's_memtime'} {s(sStamp + 2*nst[0], 2)}")
            A("s_waitcnt lgkmcnt(0)")
            lq.reset()
            nst[0] += 1
    def zero(r, n):
        for i in range(0, n, 2):
            A(f"v_mov_b64 {v(r+i,2)}, 0")
    def pace(n):
        while n > 0:
            k = min(n, 16); A(f"s_nop {k-1}"); n -= k
    def warm(n, r):
        for _ in range(n):
            A(f"v_mov_b32 {v(r)}, {v(r)}")
            A("s_nop 2")
    def k_pre(half):
        A(f"s_add_u32 m0, {s(sKl)}, {4096*half}")
        if half: A(f"s_add_u32 {s(sT+2)}, {s(sKx)}, 4096")
    def k_dma(half):
        A(f"buffer_load_dwordx4 v6, {s(S_WS,4)}, {s(sT+2 if half else sKx)} offen sc1 lds"); vq.push("kd")
    def ring_scalars():
        return [f"s_and_b32 {s(sT)}, {s(sN)}, 3",
                f"s_xor_b32 {s(sT+1)}, {s(sT)}, 2",
                f"s_mul_i32 {s(sMpo)}, {s(sT+1)}, {MENT}",
                f"s_add_u32 {s(sMpo)}, {s(sMpo)}, {s(sU7)}"]
    A(f"s_mov_b32 {s(sL)}, 0")
    for x in ring_scalars(): A(x)
    A.label(L_layer)
    A(f"s_mov_b32 {s(sS)}, 0")
    A(f"s_mov_b32 {s(sArc)}, {FAR:#x}")
    A(f"s_mul_i32 {s(sT)}, {s(sL)}, {64*MENT}")
    A(f"s_add_u32 {s(sMsrc)}, {s(sT)}, {MARCH:#x}")
    A(f"s_add_u32 {s(sMsrc)}, {s(sMsrc)}, {s(sPiece)}")
    A(f"s_add_u32 {s(sT)}, {s(sT)}, {s(sU7)}")
    A(f"s_sub_u32 {s(sMdW)}, {s(sT)}, {MCH - MARCH:#x}")
    A(f"s_lshl_b32 {s(sT)}, {s(sL)}, 24")
    A(f"s_lshl_b32 {s(sT+1)}, {s(sH)}, 13")
    A(f"s_add_u32 {s(sT)}, {s(sT)}, {s(sT+1)}")
    A(f"s_lshl_b32 {s(sT+1)}, {s(S_WAVE)}, 10")
    A(f"s_add_u32 {s(sT)}, {s(sT)}, {s(sT+1)}")
    A(f"s_add_u32 {s(sKx)}, {s(sT)}, {KF:#x}")
    A(f"s_add_u32 {s(sT)}, {s(sT)}, {s(sT+1)}")
    A(f"s_add_u32 {s(sVx)}, {s(sT)}, {VF:#x}")
    A(f"s_lshl_b32 {s(sT)}, {s(sL)}, 20")
    A(f"s_lshl_b32 {s(sT+1)}, {s(sH)}, 13")
    A(f"s_add_u32 {s(sT)}, {s(sT)}, {s(sT+1)}")
    A(f"s_add_u32 {s(sFlag)}, {s(sT)}, {FLG + F_KV:#x}")
    mark(A, 1, sL, 60)
    lp = A.newlabel("f0l"); sk = A.newlabel("f0s")
    A(f"s_mov_b32 {s(S_CNT)}, 0")
    A.label(lp)
    spin_check(A)
    A("s_sleep 1")
    A(f"buffer_load_dword v60, off, {s(S_WS,4)}, {s(sFlag)} sc1")
    A(f"buffer_load_dword v0, off, {s(S_WS,4)}, {s(sFlag)} offset:128 sc1")
    A("s_waitcnt vmcnt(0)")
    A("v_cmp_eq_u32 vcc, 0, v60")
    A(f"s_cbranch_vccnz {lp}")
    A(f"v_readfirstlane_b32 {s(sFl)}, v0")
    A("s_barrier")
    mark(A, 2, sL, 60)
    k_pre(0); k_dma(0); k_pre(1); k_dma(1)
    A(f"s_add_u32 {s(sKx)}, {s(sKx)}, {SEG}")
    A(f"s_add_u32 {s(sFlag)}, {s(sFlag)}, 128")

    A.label(L_top)
    if diag:
        A(f"s_mov_b32 s94, {s(sStamp)}")
    stamp("top")
    A("v_lshrrev_b32 v70, 2, v6")
    for i in range(4):
        A(f"ds_read_b128 {v(36+4*i,4)}, v7 offset:{1024*i}")
    pace(par("dB", 8))
    def hb_issue():
        A(f"buffer_load_dwordx4 v[52:55], v6, {s(S_WS,4)}, {s(sMsrc)} offen sc1")
        A(f"buffer_load_dwordx4 v[56:59], v6, {s(S_WS,4)}, {s(sMsrc)} offen offset:1024 sc1")
        A(f"buffer_load_dword v68, v70, {s(S_WS,4)}, {s(sMsrc)} offen offset:2048 sc1")
    def hb_take(y):
        A(f"s_waitcnt vmcnt({y+2})")
        A("v_max3_u32 v71, v52, v53, v54")
        A("v_max_u32 v71, v71, v55")
        A("ds_write_b128 v60, v[52:55]")
        A(f"s_waitcnt vmcnt({y+1})")
        A("v_max3_u32 v71, v71, v56, v57")
        A("v_max3_u32 v71, v71, v58, v59")
        A("ds_write_b128 v60, v[56:59] offset:1024")
        A(f"s_waitcnt vmcnt({y})")
        A("v_max_u32 v71, v71, v68")
        A("ds_write_b32 v69, v68 offset:2048")
        A("v_cmp_eq_u32 vcc, -1, v71")
    lp = A.newlabel("hb"); ok = A.newlabel("hbok")
    stamp("hb")
    hb_issue()
    A(f"v_add_u32 v69, {s(sPiece)}, v70")
    A("v_and_b32 v26, 0xf0, v6")
    A("v_lshlrev_b32 v26, 3, v26")
    A("v_and_b32 v27, 0x100, v6")
    A("v_lshl_add_u32 v26, v27, 17, v26")
    A("v_mov_b32 v25, -1")
    zero(16, 8); zero(8, 8)
    A(f"s_bitcmp1_b32 {s(sN)}, 0")
    A(f"s_cselect_b32 {s(sPar)}, {PSLOT}, 0")
    A(f"s_bfe_u32 {s(sClr)}, {s(sN)}, 0x10001")
    A(f"s_add_u32 {s(sPS)}, {s(sPB0)}, {s(sPar)}")
    for i in range(1, 5):
        A(f"s_add_u32 {s(sPS+i)}, {s(sPS)}, {16384*i}")
    A(f"s_add_u32 {s(sRed)}, {s(sRB0)}, {s(sPar)}")
    A(f"s_sub_u32 {s(sFlN)}, {s(sVx)}, {VF - KF - SEG:#x}")
    A(f"s_cmp_eq_u32 {s(sFl)}, 0")
    A(f"s_cselect_b32 {s(sFlN)}, {FAR:#x}, {s(sFlN)}")
    A(f"s_mov_b32 {s(S_CNT)}, 0")
    if "dblA" in ex: A("s_waitcnt vmcnt(3)")
    A(f"v_add_u32 v60, {s(sPiece)}, v6")
    if "dbl" in ex:
        pace(par("sB", 0))
        if par("wB", 0):
            hb_issue()
            warm(par("wB", 0), 71)
            hb_take(3)
            A(f"s_cbranch_vccnz {lp}")
            def hb_slow(lp=lp, ok=ok):
                A.label(lp)
                hb_issue()
                spin_check(A)
                hb_take(3)
                A(f"s_cbranch_vccnz {lp}")
                A(f"s_branch {ok}")
            ool.append(hb_slow)
        else:
            A.label(lp)
            hb_issue()
            spin_check(A)
            hb_take(3)
            A(f"s_cbranch_vccnz {lp}")
    else:
        hb_take(0)
        A(f"s_cbranch_vccz {ok}")
        A.label(lp)
        hb_issue()
        spin_check(A)
        hb_take(0)
        A(f"s_cbranch_vccnz {lp}")
    A.label(ok)
    if diag:
        A(f"s_mov_b32 s95, {s(S_CNT)}")
    A("s_waitcnt lgkmcnt(0)")
    stamp(); stamp("hb")
    A("s_barrier")
    stamp("qk")
    lq.reset(); vq.reset()

    free = [60, 64, 52, 56, 68]
    slot = {}
    rest = list(range(4, 18))
    korder = [0] + rest[0:4] + [1] + rest[4:7] + [2] + rest[7:10] + [3] + rest[10:14]
    seq = [("m", t) for t in korder] + [("f", p) for p in range(7)]
    def rd(key, r=None):
        if r is None:
            r = free.pop(0)
        slot[key] = r
        n, t = key
        if n == "m": A(f"ds_read_b128 {v(r,4)}, v2 offset:{L_M + 512 * t}")
        elif n == "f": A(f"ds_read_b128 {v(r,4)}, v5 offset:{L_M + 1024 * t}")
        elif n == "x": A(f"ds_read_b128 {v(r,4)}, v3 offset:{L_QKX + 64 * t}")
        lq.push(key)
    def rel(key):
        free.append(slot.pop(key))
    def nxt():
        if seq and free:
            rd(seq.pop(0))
    def kxr(i):
        A(f"ds_read_b128 {v(36+4*(i%4),4)}, v6 offset:{L_KX + 1024*i}"); lq.push(("kx", i // 2))
    def Vmm(p, pr):
        lq.wait(("f", p))
        A(f"v_smfmac_f32_16x16x64_bf16 {v(8+4*pr,4)}, {v(slot[('f', p)],4)}, {VW(p, pr)}, v1")
        if pr == 1: rel(("f", p))
    nxt(); nxt()
    if "dbl" in ex: A("s_waitcnt vmcnt(0)")
    nxt(); nxt(); nxt()
    A(f"buffer_load_dwordx4 v[28:31], v6, {s(S_WS,4)}, {s(sVx)} offen sc1")
    if "v2late" not in ex: A(f"buffer_load_dwordx4 v[32:35], v6, {s(S_WS,4)}, {s(sVx)} offen offset:1024 sc1")
    refill = []
    def fill():
        if refill:
            t, i = refill.pop(0)
            if t == "kx": kxr(i)
            else:
                A(f"ds_read_b128 {v(36+4*i,4)}, v7 offset:{4096*t+1024*i}"); lq.push(("w", t))
    for pos, t in enumerate(korder):
        if pos % 2 == 1 and pos + 1 < 18: lq.wait(("m", korder[pos + 1]))
        lq.wait(("m", t))
        r = slot[("m", t)]
        if t < 4:
            lq.wait(("w", t))
            b1, b2 = v(36, 8), v(44, 8)
        else:
            b1, b2 = QK1(t), QK2(t)
        A(f"v_smfmac_f32_16x16x64_bf16 v[16:19], {v(r,4)}, {b1}, v1")
        if t < 3: refill.extend((t + 1, i) for i in range(4))
        if t == 3: refill.extend(("kx", i) for i in range(4))
        fill()
        if pos == 2:
            A(f"buffer_load_dwordx4 v[32:35], v6, {s(S_WS,4)}, {s(sVx)} offen offset:1024 sc1"); vq.push("vx")
        if pos == 3:
            A(f"buffer_store_dword v25, v24, {s(S_WS,4)}, {s(sMpo)} offen{sc}"); vq.push("o")
        if pos == 4:
            A(f"buffer_store_dword v0, v24, {s(S_WS,4)}, {s(sArc)} offen sc1"); vq.push("o")
        if pos == par("pG", 7):
            A("s_mov_b32 exec_hi, 0")
            A(f"buffer_load_dword v0, v26, {s(S_WS,4)}, {s(sFlN)} offen sc1"); vq.push("o")
            A("s_mov_b32 exec_hi, -1")
        if pos == par("pG", 7) + 1:
            A(f"buffer_load_dword v0, off, {s(S_WS,4)}, {s(sFlag)} offset:128 sc1"); vq.push("o")
        A(f"v_smfmac_f32_16x16x64_bf16 v[20:23], {v(r,4)}, {b2}, v1")
        rel(("m", t)); nxt()
        fill()
    stamp("qk")
    Vmm(0, 0); Vmm(0, 1); nxt(); Vmm(1, 0)
    for r in range(4):
        A(f"v_cvt_pk_bf16_f32 {v(16+r)}, {v(16+r)}, {v(20+r)}")
    A("ds_write2_b32 v4, v16, v17 offset0:0 offset1:72"); lq.push("w")
    A("ds_write2_b32 v4, v18, v19 offset0:144 offset1:216"); lq.push("w")
    Vmm(1, 1); nxt()
    lq.wait(("f", 3))
    Vmm(2, 0); Vmm(2, 1)
    rdy = A.newlabel("rdy"); slow = A.newlabel("fls")
    A(f"s_cmp_eq_u32 {s(sFl)}, 0")
    A(f"s_cbranch_scc1 {slow}")
    A.label(rdy)
    def slow_flag():
        lp = A.newlabel("fl")
        A.label(slow)
        A(f"s_mov_b32 {s(S_CNT)}, 0")
        A.label(lp)
        spin_check(A)
        A(f"buffer_load_dword v24, off, {s(S_WS,4)}, {s(sFlag)} sc1")
        A("s_waitcnt vmcnt(0)")
        A("v_cmp_eq_u32 vcc, 0, v24")
        A(f"s_cbranch_vccnz {lp}")
        A(f"s_branch {rdy}")
    A(f"s_mov_b32 m0, {s(sKl)}")
    Vmm(3, 0); Vmm(3, 1)
    lq.wait("w")
    stamp(); stamp("qk")
    A("s_barrier")
    stamp("s")
    rd(("x", 0)); rd(("x", 1))
    Vmm(4, 0); Vmm(4, 1); rd(("x", 2)); k_dma(0)
    Vmm(5, 0); Vmm(5, 1); rd(("x", 3)); Vmm(6, 0); Vmm(6, 1); rd(("f", 7))
    def Sx(t):
        q = slot[("x", t)]; b = 36 + 8 * (t & 1)
        lq.wait(("x", t)); lq.wait(("kx", t))
        A(f"v_mfma_f32_16x16x32_bf16 v[16:19], {v(b,4)}, {v(q,4)}, {'0' if t == 0 else 'v[16:19]'}")
        if t < 2: kxr(2 * t + 4)
        A(f"v_mfma_f32_16x16x32_bf16 v[20:23], {v(b+4,4)}, {v(q,4)}, {'0' if t == 0 else 'v[20:23]'}")
        if t < 2: kxr(2 * t + 5)
    lq.wait(("x", 1))
    Sx(0); Sx(1)
    lq.wait(("x", 3))
    for t in range(4):
        q = v(slot[("x", t)], 4)
        A(f"v_mfma_f32_16x16x32_bf16 v[24:27], {q}, {q}, {'0' if t == 0 else 'v[24:27]'}")
        if t == 0:
            rel(("x", 0)); rd(("f", 8))
    b25 = "b25" in ex
    Sx(2)
    if b25: k_pre(1)
    Sx(3)
    if b25: A("s_barrier")
    stamp("s")
    WB = [36, 44, 8, 28]
    nwo = [0]
    def rd_wo(buf):
        o = nwo[0]; nwo[0] += 1
        A(f"ds_read_b128 {v(buf,4)}, v7 offset:{16384+2048*o}"); lq.push(("wo", o))
        A(f"ds_read_b128 {v(buf+4,4)}, v7 offset:{16384+2048*o+1024}"); lq.push(("wo", o))
    f7, f8 = slot[("f", 7)], slot[("f", 8)]
    others = [r for r in (52, 56, 60, 64, 68) if r not in (f7, f8)]
    De, Do = f7, f8
    Sum, Ones, Tq = others
    tA, tB, Hf = Tq, Tq + 1, Tq + 2
    lq.wait(("f", 8))
    Vmm(7, 0)
    A("v_permlane32_swap_b32 v24, v26")
    Vmm(7, 1)
    A("v_permlane32_swap_b32 v25, v27")
    Vmm(8, 0)
    if b25 and "pv" not in ex and "zw" not in ex: k_dma(1)
    Vmm(8, 1)
    A(f"v_max3_f32 v{tA}, v16, v17, v18")
    A(f"v_max3_f32 v{tB}, v19, v26, v27")
    A(f"v_max3_f32 v{tA}, v{tA}, v20, v21")
    A(f"v_max3_f32 v{tB}, v{tB}, v22, v23")
    A(f"v_max_f32 v{tA}, v{tA}, v{tB}")
    A(f"v_mov_b32 v{tB}, v{tA}")
    rd_wo(WB[0])
    A(f"v_permlane32_swap_b32 v{tA}, v{tB}")
    A(f"v_max_f32 v{tA}, v{tA}, v{tB}")
    A(f"v_mov_b32 v{tB}, v{tA}")
    A("v_cvt_pk_bf16_f32 v8, v8, v9")
    A("v_cvt_pk_bf16_f32 v9, v10, v11")
    A(f"v_permlane16_swap_b32 v{tA}, v{tB}")
    A(f"v_max_f32 v{tA}, v{tA}, v{tB}")
    A(f"v_mul_f32 v{tA}, {s(sNC1)}, v{tA}")
    for r in [26, 16, 18, 20, 22]:
        A(f"v_pk_fma_f32 {v(r,2)}, {v(r,2)}, {s(sC1,2)}, {v(tA,2)} op_sel_hi:[1,1,0]")
    A("v_exp_f32 v26, v26")
    A("v_exp_f32 v27, v27")
    A(f"v_mov_b64 {v(Hf,2)}, {s(sHalf,2)}")
    A("v_cvt_pk_bf16_f32 v24, v26, v27")
    A("v_cvt_pk_bf16_f32 v25, v26, v27")
    A("v_cvt_pk_bf16_f32 v10, v12, v13")
    A("v_cvt_pk_bf16_f32 v11, v14, v15")
    A("v_permlane32_swap_b32 v24, v25")
    A("v_exp_f32 v16, v16")
    A("v_exp_f32 v17, v17")
    A(f"v_mfma_f32_16x16x16_bf16 {v(Sum,4)}, {v(Hf,2)}, v[24:25], 0")
    A("v_exp_f32 v18, v18")
    A("v_exp_f32 v19, v19")
    A(f"v_mfma_f32_16x16x16_bf16 {v(De,4)}, v[8:9], v[24:25], 0")
    A("v_exp_f32 v20, v20")
    A("v_exp_f32 v21, v21")
    A(f"v_mfma_f32_16x16x16_bf16 {v(Do,4)}, v[10:11], v[24:25], 0")
    A("v_exp_f32 v22, v22")
    A("v_exp_f32 v23, v23")
    A(f"v_mov_b64 {v(Ones,2)}, {s(sOnes,2)}")
    A(f"v_mov_b64 {v(Ones+2,2)}, {s(sOnes,2)}")
    A("v_cvt_pk_bf16_f32 v16, v16, v17")
    A("v_cvt_pk_bf16_f32 v17, v18, v19")
    A("v_cvt_pk_bf16_f32 v18, v20, v21")
    A("v_cvt_pk_bf16_f32 v19, v22, v23")
    stamp("s")
    vq.wait("vx")
    A(f"v_add_u32 v{tA}, {s(sW64)}, v3")
    A(f"v_mfma_f32_16x16x32_bf16 {v(Sum,4)}, {v(Ones,4)}, v[16:19], {v(Sum,4)}")
    A(f"v_mfma_f32_16x16x32_bf16 {v(De,4)}, v[28:31], v[16:19], {v(De,4)}")
    A(f"v_mfma_f32_16x16x32_bf16 {v(Do,4)}, v[32:35], v[16:19], {v(Do,4)}")
    if b25 and "pv" in ex:
        k_dma(1); rd_wo(WB[1]); rd_wo(WB[2])
    else:
        rd_wo(WB[1]); rd_wo(WB[2]); rd_wo(WB[3])
    A(f"v_rcp_f32 {v(Sum)}, {v(Sum)}")
    A(f"s_mov_b64 exec, {s(sMaskLo,2)}")
    for r in (De, De + 2, Do, Do + 2):
        A(f"v_pk_mul_f32 {v(r,2)}, {v(r,2)}, {v(Sum,2)} op_sel_hi:[1,0]")
    for r in range(4):
        A(f"v_cvt_pk_bf16_f32 {v(De+r)}, {v(De+r)}, {v(Do+r)}")
    A(f"ds_write_b128 v{tA}, {v(De,4)} offset:{L_ZX}"); lq.push("zw")
    A("s_mov_b64 exec, -1")
    if b25 and "pv" in ex: rd_wo(WB[3])
    if b25 and "zw" in ex: k_dma(1)
    zr, p9 = Tq + 1, Tq + 2
    A(f"v_subrev_u32 v{zr}, {8*ROWP}, v3")
    A(f"v_cndmask_b32 v{zr}, v{zr}, v3, {s(sMaskLo,2)}")
    zero(16, 12)
    if not b25: k_pre(1)
    A(f"s_add_u32 {s(sN)}, {s(sN)}, 1")
    rs = ring_scalars()
    Z = [De, Do, Sum, Ones]
    t3 = Tq + 3
    p9c = [f"v_and_b32 v{t3}, 0xc0, v6", f"v_lshlrev_b32 v{p9}, 6, v{t3}", f"v_and_b32 v{t3}, 0x30, v6",
           f"v_lshl_add_u32 v{p9}, v{t3}, 1, v{p9}", f"v_lshrrev_b32 v{t3}, 8, v6", f"v_lshl_add_u32 v{p9}, v{t3}, 3, v{p9}"]
    if "linst" in ex:
        p9c = [f"v_and_b32 v{t3}, 0x300, v6", f"v_lshlrev_b32 v{p9}, 4, v{t3}", f"v_and_b32 v{t3}, 0xf0, v6",
               f"v_lshrrev_b32 v{t3}, 1, v{t3}", f"v_add_u32 v{p9}, v{t3}, v{p9}", "s_nop 0"]
    def wo_enter():
        lq.wait("zw")
        A("s_barrier")
        if diag and "@wo" in ex:
            A(f"s_memtime {s(sStamp + 2*nst[0], 2)}")
            A("s_waitcnt lgkmcnt(0)")
            lq.reset()
        for t in range(4):
            A(f"ds_read_b128 {v(Z[t],4)}, v{zr} offset:{L_ZX + 64*t}"); lq.push(("z", t))
        if not b25 and "xa" not in ex: k_dma(1)
        for x in p9c[:2]: A(x)
    after = rs + [f"s_mul_i32 {s(sMr)}, {s(sT)}, {MENT}",
            f"s_add_u32 {s(sMsrc)}, {s(sMr)}, {s(sPiece)}",
            f"s_add_u32 {s(sMsrc)}, {s(sMsrc)}, {MCH:#x}",
            f"s_add_u32 {s(sMr)}, {s(sMr)}, {s(sU7)}",
            f"s_add_u32 {s(sKx)}, {s(sKx)}, {SEG}",
            f"s_add_u32 {s(sVx)}, {s(sVx)}, {SEG}"]
    late = [f"s_add_u32 {s(sMdW)}, {s(sMdW)}, {MENT}",
            f"s_add_u32 {s(sFlag)}, {s(sFlag)}, 128",
            f"s_add_u32 {s(sS)}, {s(sS)}, 1",
            f"s_mov_b32 {s(S_CNT)}, 0",
            (f"s_mov_b32 {s(sArc)}, {s(sMdW)}" if "nomarch" not in ex else "s_nop 0"),
            f"s_cmp_eq_u32 {s(sIsRed)}, 0"]
    ACC = [16, 20, 24]
    def fin_ops(b, rezero):
        acc = ACC[b % 3]
        g1 = [f"v_cvt_pk_bf16_f32 {v(acc)}, {v(acc)}, {v(acc+1)}", f"v_cvt_pk_bf16_f32 {v(acc+1)}, {v(acc+2)}, {v(acc+3)}"]
        g2 = [f"v_and_or_b32 {v(acc)}, {v(acc)}, -2, {s(sClr)}", f"buffer_store_dwordx2 {v(acc,2)}, v{p9}, {s(S_WS,4)}, {s(sPS+b)} offen{sc}"]
        g3 = [f"v_mov_b64 {v(acc,2)}, 0", f"v_mov_b64 {v(acc+2,2)}, 0"] if rezero else []
        return [g1, g2, g3]
    tail_st = []
    def wo_phase(nb):
        bufq = list(WB)
        nl = WOK[:4 * nb].count("L")
        wo_enter()
        tail_st.clear()
        pend = {4: p9c[2:4], 5: p9c[4:6]}
        for b in range(nb):
            acc = ACC[b % 3]
            for t in range(4):
                o = 4 * b + t
                if o == 1: lq.wait(("z", 3))
                lq.wait(("z", t))
                if WOK[o] == "L":
                    li = WOK[:o].count("L")
                    if li == 4: lq.wait(("wo", min(7, nl - 1)))
                    lq.wait(("wo", li))
                    buf = bufq.pop(0)
                    A(f"v_smfmac_f32_16x16x64_bf16 {v(acc,4)}, {v(Z[t],4)}, {v(buf,8)}, v1")
                    if nwo[0] < nl and "xb" not in ex:
                        rd_wo(buf)
                    bufq.append(buf)
                else:
                    f, r = WoR(WOK[:o].count("R"))
                    A(f"v_smfmac_f32_16x16x64_bf16 {v(acc,4)}, {v(Z[t],4)}, {f(r,8)}, v1")
                for x in pend.pop(o, []):
                    A(x)
            g = fin_ops(b, b + 3 < nb)
            d0 = 4 if b == nb - 1 else 3
            if "xc" in ex:
                tail_st.append(g[1][1]); g[1] = g[1][:1]; g[2] = []
            for i in range(3):
                pend.setdefault(4 * b + 3 + d0 + i, []).extend(g[i])
        first = True
        for o in sorted(pend):
            if o >= 4 * nb + 3 and first:
                first = False
                for x in late: A(x)
            for x in pend[o]:
                A(x)
    five = A.newlabel("five"); join = A.newlabel("wojoin")
    A(f"s_cmp_lg_u32 {s(sFive)}, 0")
    A(f"s_cbranch_scc1 {five}")
    save = (list(lq.tags), nwo[0])
    wo_phase(4)
    A(f"s_branch {join}")
    A.label(five)
    lq.tags = list(save[0]); nwo[0] = save[1]
    wo_phase(5)
    A.label(join)
    if diag and "@wo" in ex: nst[0] += 1
    lq.reset()
    stamp(); stamp("wo"); stamp("ha")
    if "xc" in ex:
        for x in tail_st[:4]: A(x)
        A(f"s_cmp_eq_u32 {s(sFive)}, 0")
        A(f"s_cbranch_scc1 L_xc")
        A(tail_st[4])
        A.label("L_xc")
        A(f"s_cmp_eq_u32 {s(sIsRed)}, 0")
    nred = A.newlabel("nred"); lp = A.newlabel("ha"); ok = A.newlabel("haok"); rj = A.newlabel("rj")
    A("s_barrier")
    stamp("ha")
    A("v_mov_b32 v24, 0")
    if diag: A(f"s_cmp_eq_u32 {s(sIsRed)}, 0")
    A(f"s_cselect_b32 {s(sT+3)}, 1, 0")
    for x in after: A(x)
    A(f"s_cmp_lg_u32 {s(sT+3)}, 0")
    A(f"s_cbranch_scc1 {rj}")
    def idle(rj=rj, nred=nred):
        A.label(rj)
        A("s_waitcnt vmcnt(0)")
        A(f"v_readfirstlane_b32 {s(sFl)}, v0")
        A(f"s_branch {nred}")
    ool.append(idle)
    pace(par("dA", 0))
    def ha_issue():
        for i in range(4):
            A(f"buffer_load_dwordx4 {v(52+4*i,4)}, v6, {s(S_WS,4)}, {s(sRed)} offen offset:{1024*i} sc1")
    def ha_take(y, first=False):
        for i in range(4):
            A(f"s_waitcnt vmcnt({y+3-i})")
            if i in (0, 3) and first: stamp("ha")
            b = 52 + 4 * i
            A(f"v_bitop3_b32 {v(20+i)}, {v(b)}, {v(b+2)}, {s(sClr)} bitop3:0x7e")
            A(f"v_mfma_f32_16x16x32_bf16 v[16:19], {v(b,4)}, v[68:71], {'0' if i == 0 else 'v[16:19]'}")
            if i == 2: A("v_or3_b32 v20, v20, v21, v22")
        A("v_bitop3_b32 v20, v20, v23, 1 bitop3:0xa8")
        A("v_cmp_ne_u32 vcc, 0, v20")
    ha_issue()
    A("v_and_b32 v21, 16, v6")
    A("v_mov_b32 v22, 0x3f80")
    A("v_lshlrev_b32 v21, v21, v22")
    for k in range(4):
        A(f"v_cndmask_b32 {v(68+k)}, 0, v21, {s(sSel+2*k,2)}")
    for x in moff(A, 24, 25): A(x)
    if "dblA" in ex:
        pace(par("sA", 4))
        if par("wA", 0):
            ha_issue()
            warm(par("wA", 0), 20)
            ha_take(4)
            A(f"s_cbranch_vccnz {lp}")
            def ha_slow(lp=lp, ok=ok):
                A.label(lp)
                ha_issue()
                spin_check(A)
                ha_take(4)
                A(f"s_cbranch_vccnz {lp}")
                A("s_nop 4")
                A(f"s_branch {ok}")
            ool.append(ha_slow)
        else:
            A.label(lp)
            ha_issue()
            spin_check(A)
            ha_take(4)
            A(f"s_cbranch_vccnz {lp}")
    else:
        ha_take(0, True)
        A(f"s_cbranch_vccz {ok}")
        A.label(lp)
        ha_issue()
        spin_check(A)
        ha_take(0)
        A(f"s_cbranch_vccnz {lp}")
    A.label(ok)
    A(f"v_readfirstlane_b32 {s(sFl)}, v0")
    A("v_permlane32_swap_b32 v16, v18")
    A("v_permlane32_swap_b32 v17, v19")
    A("v_pk_add_f32 v[16:17], v[16:17], v[18:19]")
    A("v_cvt_pk_bf16_f32 v0, v16, v17")
    A(f"buffer_store_dword v0, v24, {s(S_WS,4)}, {s(sMr)} offen{sc}")
    A.label(nred)
    stamp(); stamp("wo"); stamp("ha")
    if diag:
        sk = A.newlabel("nod")
        A(f"s_cmp_lg_u32 {s(sS)}, 40")
        A(f"s_cbranch_scc1 {sk}")
        A(f"s_lshl_b32 {s(sT)}, {s(sH)}, 2")
        A(f"s_add_u32 {s(sT)}, {s(sT)}, {s(S_WAVE)}")
        A(f"s_lshl_b32 {s(sT)}, {s(sT)}, 7")
        A(f"s_lshl_b32 {s(sT+1)}, {s(sL)}, 14")
        A(f"s_add_u32 {s(sT)}, {s(sT)}, {s(sT+1)}")
        A(f"s_add_u32 {s(sT)}, {s(sT)}, {DBGW + 0x1000:#x}")
        for i in range(7):
            A(f"v_mov_b32 v50, {s(sStamp+2*min(i, nst[0]-1))}")
            A(f"buffer_store_dword v50, off, {s(S_WS,4)}, {s(sT)} offset:{4*i}")
        for i, r in enumerate((94, 95, S_CNT)):
            A(f"v_mov_b32 v50, {s(r)}")
            A(f"buffer_store_dword v50, off, {s(S_WS,4)}, {s(sT)} offset:{64+4*i}")
        A.label(sk)
    A(f"s_cmp_lt_u32 {s(sS)}, 63")
    A("s_barrier")
    A(f"s_cbranch_scc1 {L_top}")
    A(f"buffer_store_dword v0, v24, {s(S_WS,4)}, {s(sArc)} offen sc1")
    mark(A, 3, sL, 40)
    A("s_waitcnt vmcnt(0)")
    A(f"s_add_u32 {s(sL)}, {s(sL)}, 1")
    A(f"s_cmp_lt_u32 {s(sL)}, {nlayers}")
    A(f"s_cbranch_scc1 {L_layer}")
    A(f"s_branch L_c{tag}_end")
    slow_flag()
    for f in ool: f()
    A.label(f"L_c{tag}_end")
```

```python
from asmlib import *

NAME = "interleave_layers__memory_aug_recurrent_mem_tr__spectral_gfnet__prompt"

FLG = 0x1800000
FL_STRIDE = 0x100000
F_XN, F_X, F_Y, F_KV, F_O, F_X1 = [128 * i for i in (0, 128, 256, 512, 2560, 4608)]
MENT = 9216
MARCH = 0x020000
MCH = 0x140000
PART = 0x150000
PSLOT = 80 * 4096
DBGW = 0x2F0000
XN = 0x320000
XSZ = 0x240000
X1 = 0x7A0000
X2 = 0xC20000
XF = 0xE60000
YF = 0x12E0000
KF = 0x2000000
VF = 0x4000000
OF = 0x6000000
BIG = 0x1000000
WS_SIZE = 0x10000000

KA_X, KA_MEM0, KA_WQ, KA_WK, KA_WV, KA_WO, KA_SEG, KA_BX, KA_WR, KA_WI, KA_OUT, KA_DBG, KA_WS = [8 * i for i in range(13)]

S_WS = 8
S_DBG = 12
S_A = 16
S_B = 20
S_C = 24
S_D = 28
S_WAVE = 32
S_ROLE = 33
S_T0 = 34
S_CNT = 40
SPIN_MAX = 0x100000

class Q:
    def __init__(self, asm, name, mx):
        self.a = asm; self.name = name; self.mx = mx; self.tags = []
    def push(self, tag=None):
        self.tags.append(tag)
    def wait(self, tag):
        if tag not in self.tags:
            return
        k = len(self.tags) - 1 - max(i for i, t in enumerate(self.tags) if t == tag)
        k = min(k, self.mx)
        self.a(f"s_waitcnt {self.name}({k})")
        self.tags = self.tags[len(self.tags) - k:] if k else []
    def drain(self):
        self.a(f"s_waitcnt {self.name}(0)")
        self.tags = []
    def reset(self):
        self.tags = []

def build_srd(A, d, ka_pair, size):
    A(f"s_mov_b32 {s(d)}, {s(ka_pair)}")
    A(f"s_and_b32 {s(d+1)}, {s(ka_pair+1)}, 0xffff")
    A(f"s_mov_b32 {s(d+2)}, {size:#x}")
    A(f"s_mov_b32 {s(d+3)}, 0x20000")

def load_srd(A, d, ka_off, size, tmp=S_T0):
    A(f"s_load_dwordx2 {s(tmp,2)}, s[0:1], {ka_off}")
    A("s_waitcnt lgkmcnt(0)")
    build_srd(A, d, tmp, size)

def spin_check(A, abort="L_abort"):
    A(f"s_add_u32 {s(S_CNT)}, {s(S_CNT)}, 1")
    A(f"s_cmp_gt_u32 {s(S_CNT)}, {SPIN_MAX:#x}")
    A(f"s_cbranch_scc1 {abort}")

def wait_flags(A, soff, n, tmp, sleep=1, pre=None):
    sk = A.newlabel("wfs")
    A(f"s_cmp_lg_u32 {s(S_WAVE)}, 0")
    A(f"s_cbranch_scc1 {sk}")
    A(f"s_mov_b32 {s(S_CNT)}, 0")
    if pre is not None:
        lp = A.newlabel("wfp")
        A(f"v_mov_b32 {v(tmp)}, {128*pre}")
        A.label(lp)
        spin_check(A)
        A(f"s_sleep {sleep}")
        A(f"buffer_load_dword {v(tmp+2)}, {v(tmp)}, {s(S_WS,4)}, {s(soff)} offen sc1")
        A("s_waitcnt vmcnt(0)")
        A(f"v_cmp_eq_u32 vcc, 0, {v(tmp+2)}")
        A(f"s_cbranch_vccnz {lp}")
    lp = A.newlabel("wf"); ent = A.newlabel("wfe")
    A(f"v_min_u32 {v(tmp)}, {min(n, 64)-1}, v0")
    A(f"v_lshlrev_b32 {v(tmp)}, 7, {v(tmp)}")
    if n > 64:
        A(f"v_add_u32 {v(tmp+1)}, 64, v0")
        A(f"v_min_u32 {v(tmp+1)}, {n-1}, {v(tmp+1)}")
        A(f"v_lshlrev_b32 {v(tmp+1)}, 7, {v(tmp+1)}")
    A(f"s_branch {ent}")
    A.label(lp)
    spin_check(A)
    if sleep and pre is None: A(f"s_sleep {sleep}")
    A.label(ent)
    A(f"buffer_load_dword {v(tmp+2)}, {v(tmp)}, {s(S_WS,4)}, {s(soff)} offen sc1")
    if n > 64:
        A(f"buffer_load_dword {v(tmp+3)}, {v(tmp+1)}, {s(S_WS,4)}, {s(soff)} offen sc1")
    A("s_waitcnt vmcnt(0)")
    if n > 64:
        A(f"v_min_u32 {v(tmp+2)}, {v(tmp+2)}, {v(tmp+3)}")
    A(f"v_cmpx_eq_u32 vcc, 0, {v(tmp+2)}")
    A(f"s_cbranch_execnz {lp}")
    A("s_mov_b64 exec, -1")
    A.label(sk)
    A("s_barrier")

MARKS = False
def mark(A, idx, layer_sgpr=None, vt=255):
    import common
    if not common.MARKS:
        return
    A("s_memrealtime s[100:101]")
    A(f"s_lshl_b32 s98, {s(S_ROLE)}, 8")
    if layer_sgpr is not None:
        A(f"s_lshl_b32 s99, {s(layer_sgpr)}, 6")
        A("s_add_u32 s98, s98, s99")
    A(f"s_add_u32 s98, s98, {DBGW + 0x8000:#x}")
    A("s_waitcnt lgkmcnt(0)")
    A(f"v_mov_b32 {v(vt)}, s100")
    A(f"buffer_store_dword {v(vt)}, off, {s(S_WS,4)}, s98 offset:{4*idx}")
```

```python
from common import *
from chain import f2u
from pwork import wait_init, set_flag
import math

D_F64 = 0
D_F32 = 24576
D_T1 = 30720
D_T2 = 47104
D_JOB = 63488
D_COL = D_JOB
D_E = D_JOB
ERS = 608
D_XO = D_JOB + 20480
D_Y = D_JOB
YB = 18432
D_EO = D_JOB + 2 * YB
EOS = 1168

sRD, sL, sHS, sT, sT2, sIsF, sCol, sStep, sRow, sT3 = range(41, 51)
sJob = 51
sAct = 52
sM1 = 54
sK = 56
TB = 188
FILT = 156

def T(q, t):
    i = (q * 9 + t) * 4
    return a(i, 4) if i < 256 else v(TB + i - 256, 4)

def ln_stats(A, X, tmp):
    t0 = tmp
    A(f"v_pk_add_f32 {v(t0,2)}, {v(X,2)}, {v(X+2,2)}")
    A(f"v_pk_add_f32 {v(t0+2,2)}, {v(X+4,2)}, {v(X+6,2)}")
    for r in range(8, 48, 4):
        A(f"v_pk_add_f32 {v(t0,2)}, {v(t0,2)}, {v(X+r,2)}")
        A(f"v_pk_add_f32 {v(t0+2,2)}, {v(t0+2,2)}, {v(X+r+2,2)}")
    A(f"v_pk_add_f32 {v(t0,2)}, {v(t0,2)}, {v(t0+2,2)}")
    A(f"v_add_f32 {v(t0)}, {v(t0)}, {v(t0+1)}")
    A(f"v_cndmask_b32 {v(t0)}, 0, {v(t0)}, {s(sAct,2)}")
    def rowsum():
        for sh in (8, 4, 2, 1):
            A(f"v_add_f32_dpp {v(t0)}, {v(t0)}, {v(t0)} row_ror:{sh} row_mask:0xf bank_mask:0xf")
    rowsum()
    A(f"v_mul_f32 {v(t0)}, {f2u(-1.0/576):#x}, {v(t0)}")
    for r in range(0, 48, 2):
        A(f"v_pk_add_f32 {v(X+r,2)}, {v(X+r,2)}, {v(t0,2)} op_sel_hi:[1,0]")
    A(f"v_pk_mul_f32 {v(t0,2)}, {v(X,2)}, {v(X,2)}")
    A(f"v_pk_mul_f32 {v(t0+2,2)}, {v(X+2,2)}, {v(X+2,2)}")
    for r in range(4, 48, 4):
        A(f"v_pk_fma_f32 {v(t0,2)}, {v(X+r,2)}, {v(X+r,2)}, {v(t0,2)}")
        A(f"v_pk_fma_f32 {v(t0+2,2)}, {v(X+r+2,2)}, {v(X+r+2,2)}, {v(t0+2,2)}")
    A(f"v_pk_add_f32 {v(t0,2)}, {v(t0,2)}, {v(t0+2,2)}")
    A(f"v_add_f32 {v(t0)}, {v(t0)}, {v(t0+1)}")
    A(f"v_cndmask_b32 {v(t0)}, 0, {v(t0)}, {s(sAct,2)}")
    rowsum()
    def rnd():
        A(f"v_cvt_pk_bf16_f32 {v(t0)}, {v(t0)}, {v(t0)}")
        A(f"v_lshlrev_b32 {v(t0)}, 16, {v(t0)}")
    A(f"v_mul_f32 {v(t0)}, {f2u(1.0/576):#x}, {v(t0)}")
    rnd()
    A(f"v_add_f32 {v(t0)}, {f2u(1e-5):#x}, {v(t0)}")
    rnd()
    A(f"v_sqrt_f32 {v(t0)}, {v(t0)}")
    rnd()
    A(f"v_rcp_f32 {v(t0)}, {v(t0)}")

def unpack(A, src, dst, n):
    for i in range(n):
        A(f"v_lshlrev_b32 {v(dst+2*i)}, 16, {v(src+i)}")
        A(f"v_and_b32 {v(dst+2*i+1)}, 0xffff0000, {v(src+i)}")

def load_rows(A, R, srd, soff, sc):
    for i in range(3):
        A(f"buffer_load_dwordx4 {v(R+8*i,4)}, v2, {s(srd,4)}, {s(soff)} offen offset:{192*i}{sc}")
        A(f"buffer_load_dwordx4 {v(R+8*i+4,4)}, v3, {s(srd,4)}, {s(soff)} offen offset:{192*(2-i)}{sc}")

def store_rows(A, R, srd, soff, sc):
    for i in range(3):
        A(f"buffer_store_dwordx4 {v(R+8*i,4)}, v2, {s(srd,4)}, {s(soff)} offen offset:{192*i}{sc}")
        A(f"buffer_store_dwordx4 {v(R+8*i+4,4)}, v3, {s(srd,4)}, {s(soff)} offen offset:{192*(2-i)}{sc}")

def emit_xn(A, X, tmp, R, layer_sgpr_plus):
    for r in range(0, 48, 2):
        A(f"v_pk_mul_f32 {v(X+r,2)}, {v(X+r,2)}, {v(tmp,2)} op_sel_hi:[1,0]")
    for i in range(24):
        A(f"v_cvt_pk_bf16_f32 {v(R+i)}, {v(X+2*i)}, {v(X+2*i+1)}")
    A(f"s_lshr_b32 {s(sT)}, {s(sHS)}, 1")
    A(f"s_mul_i32 {s(sT)}, {s(sT)}, 36864")
    A(f"s_and_b32 {s(sT2)}, {s(sHS)}, 1")
    A(f"s_lshl_b32 {s(sT2)}, {s(sT2)}, 7")
    A(f"s_add_u32 {s(sT)}, {s(sT)}, {s(sT2)}")
    A(f"s_add_u32 {s(sT2)}, {s(sL)}, {layer_sgpr_plus}")
    A(f"s_mul_i32 {s(sT3)}, {s(sT2)}, {XSZ}")
    A(f"s_add_u32 {s(sT)}, {s(sT)}, {s(sT3)}")
    A(f"s_add_u32 {s(sT)}, {s(sT)}, {XN:#x}")
    for i in range(3):
        A(f"s_add_u32 {s(sT3)}, {s(sT)}, {6144*i}")
        A(f"buffer_store_dwordx4 {v(R+8*i,4)}, v4, {s(S_WS,4)}, {s(sT3)} offen sc1")
        A(f"buffer_store_dwordx4 {v(R+8*(2-i)+4,4)}, v5, {s(S_WS,4)}, {s(sT3)} offen sc1")
    A(f"s_lshl_b32 {s(sT)}, {s(sT2)}, 20")
    A(f"s_lshl_b32 {s(sT2)}, {s(sHS)}, 7")
    A(f"s_add_u32 {s(sT)}, {s(sT)}, {s(sT2)}")
    publish(A, sT, FLG + F_XN, tmp)

def publish(A, soff, imm, tmp):
    sk = A.newlabel("df")
    A(f"s_add_u32 {s(soff)}, {s(soff)}, {imm:#x}")
    A("s_waitcnt vmcnt(0)")
    A("s_barrier")
    A(f"s_cmp_lg_u32 {s(S_WAVE)}, 0")
    A(f"s_cbranch_scc1 {sk}")
    set_flag(A, soff, tmp)
    A.label(sk)

def gen_tables(A):
    A(f"s_cmp_ge_u32 {s(S_WAVE)}, 2")
    A(f"s_cselect_b32 {s(sT)}, 1, 0")
    A(f"s_cmp_lg_u32 {s(sIsF)}, 0")
    A(f"s_mov_b32 {s(sK)}, {f2u(-0.25):#x}")
    A(f"s_cselect_b32 {s(sK)}, {f2u(0.25):#x}, {s(sK)}")
    A(f"s_cselect_b32 {s(sK+1)}, 0, {f2u(1.0/1152):#x}")
    A(f"s_cselect_b32 {s(sK+2)}, {f2u(1.0/1152):#x}, 0")
    A(f"s_cmp_lg_u32 {s(sT)}, 0")
    A(f"s_cselect_b32 {s(sK)}, {s(sK)}, 0")
    A(f"s_cselect_b32 {s(sK+3)}, {f2u(0.5):#x}, 0")
    A(f"s_and_b32 {s(sT2)}, {s(S_WAVE)}, 1")
    A(f"s_mul_i32 {s(sT2)}, {s(sT2)}, 144")
    A(f"v_add_u32 v16, {s(sT2)}, v12")
    A("v_lshlrev_b32 v17, 3, v13")
    A("v_cvt_f32_u32 v17, v17")
    A("v_cmp_eq_u32 vcc, 0, v16")
    A(f"s_cmp_lg_u32 {s(sIsF)}, 0")
    A(f"s_cselect_b64 {s(sM1,2)}, vcc, 0")
    A("v_mov_b32 v18, 288")
    A(f"v_cndmask_b32 v18, v16, v18, {s(sM1,2)}")
    A(f"s_cmp_lg_u32 {s(sT)}, 0")
    A(f"s_cselect_b64 {s(sM1,2)}, 0, {s(sM1,2)}")
    A("v_mov_b32 v19, 1.0")
    A(f"v_cndmask_b32 v19, v19, 0, {s(sM1,2)}")
    A("v_cmp_eq_u32 vcc, 0, v13")
    A(f"s_cmp_lg_u32 {s(sIsF)}, 0")
    A(f"s_cselect_b64 {s(sM1,2)}, 0, vcc")
    A("v_lshlrev_b32 v20, 31, v12")
    A(f"v_xor_b32 v20, {s(sK+3)}, v20")
    for q in range(9):
        if q == 0:
            A("v_cvt_f32_u32 v21, v18")
        else:
            A(f"v_add_u32 v21, {16*q}, v16")
            A("v_cvt_f32_u32 v21, v21")
        A(f"v_mov_b32 v22, {s(sK+1)}")
        A(f"v_fmac_f32 v22, {f2u(2.0/1152):#x}, v21")
        A(f"v_mov_b32 v23, {s(sK)}")
        A(f"v_fmac_f32 v23, {s(sK+2)}, v21")
        A("v_fmac_f32 v23, v17, v22")
        for t in range(9):
            for i in range(8):
                b = 32 * t + i
                if b == 0:
                    A(f"v_cos_f32 {v(24+i)}, v23")
                else:
                    A(f"v_fmamk_f32 {v(24+i)}, v22, {f2u(float(b)):#x}, v23")
                    A(f"v_cos_f32 {v(24+i)}, {v(24+i)}")
            if q == 0:
                for i in range(0, 8):
                    A(f"v_mul_f32 {v(24+i)}, v19, {v(24+i)}")
            if t == 0:
                A(f"v_cndmask_b32 v24, v24, v20, {s(sM1,2)}")
            idx = (q * 9 + t) * 4
            for d in range(4):
                if idx < 256:
                    A(f"v_cvt_pk_bf16_f32 {v(24+2*d)}, {v(24+2*d)}, {v(25+2*d)}")
                    A(f"v_accvgpr_write_b32 {a(idx+d)}, {v(24+2*d)}")
                else:
                    A(f"v_cvt_pk_bf16_f32 {v(TB+idx-256+d)}, {v(24+2*d)}, {v(25+2*d)}")
    A("v_and_b32 v16, 31, v0")
    A("v_cvt_f32_u32 v16, v16")
    A("v_lshrrev_b32 v17, 5, v0")
    A("v_lshlrev_b32 v17, 2, v17")
    A("v_cvt_f32_u32 v17, v17")
    A(f"v_cvt_f32_u32 v18, {s(S_WAVE)}")
    A(f"s_lshl_b32 {s(sT)}, {s(S_WAVE)}, 10")
    A(f"v_add_u32 v19, {s(sT)}, v6")
    A("v_mov_b32 v20, v17")
    A(f"v_fmac_f32 v20, {f2u(16.0):#x}, v18")
    def trio(u, base, off, stride):
        for i in range(8):
            A(f"v_add_f32 {v(24+i)}, {f2u(float(8*(i>>2)+(i&3))):#x}, {v(base)}")
            A(f"v_mul_f32 {v(24+i)}, {v(24+i)}, {v(u)}")
            A(f"v_sin_f32 {v(32+i)}, {v(24+i)}")
            A(f"v_cos_f32 {v(24+i)}, {v(24+i)}")
        for d in range(4):
            A(f"v_cvt_pk_bf16_f32 {v(40+d)}, {v(24+2*d)}, {v(25+2*d)}")
            A(f"v_cvt_pk_bf16_f32 {v(44+d)}, {v(32+2*d)}, {v(33+2*d)}")
            A(f"v_xor_b32 {v(48+d)}, 0x80008000, {v(44+d)}")
        for k in range(3):
            A(f"ds_write_b128 v19, {v(40+4*k,4)} offset:{off + stride*k}")
        A("s_waitcnt lgkmcnt(0)")
    for tl in range(2):
        A(f"v_add_f32 v21, {f2u(32.0*tl):#x}, v16")
        A(f"v_mul_f32 v21, {f2u(1.0/64):#x}, v21")
        trio(21, 20, D_F64 + 4096 * tl, 8192)
    sk = A.newlabel("nf32")
    A(f"s_cmp_ge_u32 {s(S_WAVE)}, 2")
    A(f"s_cbranch_scc1 {sk}")
    A(f"v_mul_f32 v21, {f2u(1.0/32):#x}, v16")
    trio(21, 20, D_F32, 2048)
    A.label(sk)
    A(f"s_lshl_b32 {s(sT)}, {s(S_WAVE)}, 11")
    A(f"v_add_u32 v19, {s(sT)}, v6")
    A("v_mov_b32 v20, v17")
    A(f"v_fmac_f32 v20, {f2u(8.0):#x}, v18")
    scale = 2.0 / 576 / 2048
    for tbl in range(2):
        for tl in range(2):
            if tbl == 0:
                A(f"v_add_f32 v21, {f2u(32.0*tl):#x}, v16")
                radd = 0
            else:
                A("v_mov_b32 v21, v16")
                radd = 32 * tl
            A(f"v_mul_f32 v21, {f2u(1.0/2048):#x}, v21")
            for r in range(4):
                A(f"v_add_f32 {v(24+r)}, {f2u(float(r+radd)):#x}, v20")
                A(f"v_mul_f32 {v(24+r)}, {v(24+r)}, v21")
                A(f"v_sin_f32 {v(28+r)}, {v(24+r)}")
                A(f"v_cos_f32 {v(24+r)}, {v(24+r)}")
            if tbl == 1:
                for r in range(8):
                    A(f"v_mul_f32 {v(24+r)}, {f2u(scale):#x}, {v(24+r)}")
            off = (D_T1, D_T2)[tbl] + 8192 * tl
            A(f"ds_write_b128 v19, v[24:27] offset:{off}")
            A(f"ds_write_b128 v19, v[28:31] offset:{off + 1024}")
            A("s_waitcnt lgkmcnt(0)")
    A(f"s_cmp_eq_u32 {s(sCol)}, 0")
    A(f"s_cselect_b32 {s(sT)}, 288, {s(sCol)}")
    A(f"s_lshl_b32 {s(sT)}, {s(sT)}, 1")
    A("v_and_b32 v16, 31, v0")
    A("v_lshrrev_b32 v17, 5, v0")
    A("v_lshl_add_u32 v16, v17, 8, v16")
    A("v_mul_u32_u24 v16, 578, v16")
    A(f"v_add_u32 v16, {s(sT)}, v16")
    for tl in range(2):
        for r in range(16):
            n = tl * 16 + r
            A(f"s_mov_b32 {s(sT)}, {(32*tl + 64*(8*(r>>2) + (r&3))) * 578:#x}")
            A(f"buffer_load_ushort {v(FILT+n)}, v16, {s(S_C,4)}, {s(sT)} offen")
            A(f"buffer_load_ushort {v(24+r)}, v16, {s(S_D,4)}, {s(sT)} offen")
        A("s_waitcnt vmcnt(0)")
        for r in range(16):
            A(f"v_lshl_or_b32 {v(FILT+tl*16+r)}, {v(24+r)}, 16, {v(FILT+tl*16+r)}")

def fft_job(A):
    lq = Q(A, "lgkmcnt", 15)
    ACC = 16
    OP = 80
    Z0 = 112
    TBUF = 128
    TW = 144
    TM = 152
    def acc(tl, ri): return ACC + (tl * 2 + ri) * 16
    def op(ri, ks): return OP + (ri * 4 + ks) * 4
    A(f"s_lshl_b32 {s(sT)}, {s(sL)}, 20")
    A(f"s_add_u32 {s(sT)}, {s(sT)}, {FLG + F_X:#x}")
    wait_flags(A, sT, 128, 16, sleep=FSLEEP[0], pre=123)
    mark(A, 5, sL, 16)
    A(f"s_mul_i32 {s(sT)}, {s(sL)}, {XSZ}")
    A(f"s_lshl_b32 {s(sT2)}, {s(sCol)}, 13")
    A(f"s_add_u32 {s(sRow)}, {s(sT)}, {s(sT2)}")
    A(f"s_add_u32 {s(sT)}, {s(sRow)}, {XF:#x}")
    A(f"s_mul_i32 {s(sT2)}, {s(S_WAVE)}, 9216")
    A(f"s_add_u32 {s(sT2)}, {s(sT2)}, {D_COL}")
    for i in range(8):
        if i % 4 == 0:
            A(f"s_add_u32 m0, {s(sT2)}, {1024*i}")
            if i: A(f"s_add_u32 {s(sT)}, {s(sT)}, 4096")
        A(f"buffer_load_dwordx4 v6, {s(S_WS,4)}, {s(sT)} offen offset:{1024*(i%4)} sc1 lds")
    A("v_lshrrev_b32 v14, 5, v0")
    A("v_lshlrev_b32 v14, 9, v14")
    A("v_bfe_u32 v15, v0, 2, 2")
    A("v_lshl_add_u32 v14, v15, 7, v14")
    A("v_bfe_u32 v15, v0, 4, 1")
    A("v_lshl_add_u32 v14, v15, 6, v14")
    A("v_and_b32 v15, 3, v0")
    A("v_lshl_add_u32 v14, v15, 3, v14")
    A(f"v_add_u32 v14, {s(sT2)}, v14")
    ring = {"free": [TBUF, TBUF + 4, TBUF + 8, TBUF + 12], "q": [], "at": {}}
    def tq(step):
        ring["q"] += [(step, tl, ks, k) for tl in range(2) for ks in range(4) for k in range(3)]
    def tnext():
        while ring["q"] and ring["free"]:
            key = ring["q"].pop(0); r = ring["free"].pop(0); ring["at"][key] = r
            A(f"ds_read_b128 {v(r,4)}, v6 offset:{D_F64 + 4096*key[1] + 1024*key[2] + 8192*key[3]}"); lq.push(key)
    def trel(key):
        ring["free"].append(ring["at"].pop(key)); tnext()
    tq(1); tnext()
    A("s_waitcnt vmcnt(0)")
    mark(A, 13, sL, 155)
    for ks in range(4):
        for ri in range(2):
            for j in range(2):
                A(f"ds_read_b64_tr_b16 {v(op(ri,ks)+2*j,2)}, v14 offset:{(16*ks+8*j)*128 + 32*ri}"); lq.push(("x", ks))
    A("v_and_b32 v14, 31, v0")
    A("v_mul_u32_u24 v14, 144, v14")
    A("v_lshrrev_b32 v15, 5, v0")
    A("v_lshl_add_u32 v14, v15, 3, v14")
    A(f"v_add_u32 v14, {s(sT2)}, v14")
    def Z(ri, ks): return Z0 + (ri * 2 + ks) * 4 if ks < 2 else op(ri, ks)
    F32R = [[TBUF, TBUF + 4, TBUF + 8], [TBUF + 12, op(0, 0), op(0, 1)]]
    TW2 = op(1, 0)
    def big(step, tl, kss, src):
        conj = step == 4
        out = []
        for ks in kss:
            kr, ki = (2, 1) if conj else (1, 2)
            for (ri, dat, k, fst, last) in sorted([(0, 0, 0, ks == 0, False), (1, 1, 0, ks == 0, True), (0, 1, kr, False, True), (1, 0, ki, False, True)], key=lambda x: x[2]):
                def it(ri=ri, dat=dat, k=k, fst=fst, last=last, ks=ks):
                    key = (step, tl, ks, k)
                    if step == 1: lq.wait(("x", ks))
                    lq.wait(key)
                    d = v(acc(tl, ri), 16)
                    A(f"v_mfma_f32_32x32x16_bf16 {d}, {v(src(dat, ks),4)}, {v(ring['at'][key],4)}, {'0' if fst else d}")
                    if last: trel(key)
                out.append(it)
        return out
    def small(tl, conj):
        out = []
        for k2 in range(2):
            C, S, N = F32R[k2]
            sr, si = (N, S) if conj else (S, N)
            for (ri, dat, tab, fst) in ((0, 0, C, k2 == 0), (1, 1, C, k2 == 0), (0, 1, sr, False), (1, 0, si, False)):
                def it(ri=ri, dat=dat, tab=tab, fst=fst, k2=k2):
                    lq.wait("f32")
                    d = v(acc(tl, ri), 16); x = v(Z(dat, 2 * tl + k2), 4)
                    o1, o2 = (x, v(tab, 4)) if conj else (v(tab, 4), x)
                    A(f"v_mfma_f32_32x32x16_bf16 {d}, {o1}, {o2}, {'0' if fst else d}")
                out.append(it)
        return out
    def cmul(kind, tl, dbl=True):
        out = []
        bufs = [TW, TW2] if dbl else [TW, TW]
        def rdtw(rq):
            b = bufs[rq & 1]
            off = (D_T1 if kind == 1 else D_T2) + 8192 * tl + 2048 * rq
            A(f"ds_read_b128 {v(b,4)}, v6 offset:{off}"); lq.push(("w", kind, tl, rq))
            A(f"ds_read_b128 {v(b+4,4)}, v6 offset:{off+1024}"); lq.push(("w", kind, tl, rq))
        if kind != 2:
            rdtw(0)
            if dbl: rdtw(1)
        n1, n2 = ("", " neg_lo:[1,0,0] neg_hi:[1,0,0]") if kind == 1 else (" neg_lo:[1,0,0] neg_hi:[1,0,0]", "")
        for rq in range(4):
            b = bufs[rq & 1]
            if kind == 2:
                for r in range(4):
                    f = FILT + tl * 16 + rq * 4 + r
                    out.append(lambda b=b, r=r, f=f: A(f"v_lshlrev_b32 {v(b+r)}, 16, {v(f)}"))
                    out.append(lambda b=b, r=r, f=f: A(f"v_and_b32 {v(b+4+r)}, 0xffff0000, {v(f)}"))
            for p in range(2):
                zr, zi = acc(tl, 0) + 4 * rq + 2 * p, acc(tl, 1) + 4 * rq + 2 * p
                c, sn = v(b + 2 * p, 2), v(b + 4 + 2 * p, 2)
                ks = 2 * tl + (rq >> 1); d = 2 * (rq & 1) + p
                cb, sb = b + 2 * p, b + 4 + 2 * p
                m1, m2 = ("", "-") if kind == 1 else ("-", "")
                def first(zr=zr, cb=cb, rq=rq):
                    lq.wait(("w", kind, tl, rq))
                    A(f"v_mul_f32 {v(TM)}, {v(zr)}, {v(cb)}")
                out.append(first)
                def fm(d, x, y, neg):
                    return f"v_fma_f32 {v(d)}, -{v(x)}, {v(y)}, {v(d)}" if neg else f"v_fmac_f32 {v(d)}, {v(x)}, {v(y)}"
                for x in (f"v_mul_f32 {v(TM+1)}, {v(zr+1)}, {v(cb+1)}",
                          f"v_mul_f32 {v(TM+2)}, {v(zi)}, {v(cb)}",
                          f"v_mul_f32 {v(TM+3)}, {v(zi+1)}, {v(cb+1)}",
                          fm(TM, zi, sb, m1), fm(TM + 1, zi + 1, sb + 1, m1),
                          fm(TM + 2, zr, sb, m2), fm(TM + 3, zr + 1, sb + 1, m2)):
                    out.append(lambda x=x: A(x))
                if p == 1 and kind != 2:
                    nx = rq + (2 if dbl else 1)
                    if nx < 4: out.append(lambda nx=nx: rdtw(nx))
                out.append(lambda ks=ks, d=d: A(f"v_cvt_pk_bf16_f32 {v(Z(0,ks)+d)}, {v(TM)}, {v(TM+1)}"))
                out.append(lambda ks=ks, d=d: A(f"v_cvt_pk_bf16_f32 {v(Z(1,ks)+d)}, {v(TM+2)}, {v(TM+3)}"))
        return out
    def outp(tl):
        out = []
        for ri in range(2):
            for rq in range(4):
                z = acc(tl, ri) + 4 * rq
                out.append(lambda z=z: A(f"v_cvt_pk_bf16_f32 {v(z)}, {v(z)}, {v(z+1)}"))
                out.append(lambda z=z: A(f"v_cvt_pk_bf16_f32 {v(z+1)}, {v(z+2)}, {v(z+3)}"))
                def wr(z=z, ri=ri, rq=rq):
                    A(f"ds_write_b64 v14, {v(z,2)} offset:{32*144*tl + (rq>>1)*64 + ri*32 + (rq&1)*16}"); lq.push("o")
                out.append(wr)
        return out
    def merge(ms, vs, lead=2):
        ms = list(ms); vs = list(vs)
        n = 0
        while ms:
            ms.pop(0)(); n += 1
            if n >= lead:
                k = -(-len(vs) // (len(ms) + 1))
                for _ in range(k): vs.pop(0)()
        for x in vs: x()
    def rdf32():
        for k2 in range(2):
            for k in range(3):
                A(f"ds_read_b128 {v(F32R[k2][k],4)}, v6 offset:{D_F32 + 1024*k2 + 2048*k}"); lq.push("f32")
    merge(big(1, 0, range(4), op), [])
    merge(big(1, 1, range(4), op), cmul(1, 0, dbl=False))
    rdf32()
    merge(small(0, False), cmul(1, 1))
    merge(small(1, False), cmul(2, 0))
    merge(small(0, True), cmul(2, 1))
    merge(small(1, True), cmul(3, 0))
    tq(4); tnext()
    merge(big(4, 0, (0, 1), Z), cmul(3, 1))
    merge(big(4, 0, (2, 3), Z), [])
    merge(big(4, 1, range(4), Z), outp(0))
    mark(A, 14, sL, 155)
    merge([], outp(1))
    A("v_lshrrev_b32 v14, 3, v0")
    A("v_mul_u32_u24 v14, 144, v14")
    A("v_and_b32 v15, 7, v0")
    A("v_lshl_add_u32 v14, v15, 4, v14")
    A(f"v_add_u32 v14, {s(sT2)}, v14")
    A("s_waitcnt lgkmcnt(0)")
    for i in range(8):
        A(f"ds_read_b128 {v(OP+4*i,4)}, v14 offset:{8*144*i}")
    A(f"s_add_u32 {s(sT)}, {s(sRow)}, {YF:#x}")
    for i in range(8):
        A(f"s_waitcnt lgkmcnt({7-i})")
        if i == 4: A(f"s_add_u32 {s(sT)}, {s(sT)}, 4096")
        A(f"buffer_store_dwordx4 {v(OP+4*i,4)}, v6, {s(S_WS,4)}, {s(sT)} offen offset:{1024*(i%4)} sc1")
    A(f"s_lshl_b32 {s(sT)}, {s(sL)}, 20")
    A(f"s_lshl_b32 {s(sT2)}, {s(sRD)}, 7")
    A(f"s_add_u32 {s(sT)}, {s(sT)}, {s(sT2)}")
    publish(A, sT, FLG + F_Y, 14)

def fwd_job(A):
    R, X, tmp = 16, 40, 88
    A(f"s_lshl_b32 {s(sT)}, {s(sL)}, 20")
    A(f"s_mul_i32 {s(sT2)}, {s(sHS)}, {18*128}")
    A(f"s_add_u32 {s(sT)}, {s(sT)}, {s(sT2)}")
    A(f"s_add_u32 {s(sT)}, {s(sT)}, {FLG + F_X1:#x}")
    wait_flags(A, sT, 18, 16, sleep=FSLEEP[1])
    mark(A, 3, sL, 16)
    A(f"s_mul_i32 {s(sT)}, {s(sL)}, {XSZ}")
    A(f"s_mul_i32 {s(sT2)}, {s(sHS)}, {16*1152}")
    A(f"s_add_u32 {s(sT)}, {s(sT)}, {s(sT2)}")
    A(f"s_add_u32 {s(sT)}, {s(sT)}, {X1:#x}")
    load_rows(A, R, S_WS, sT, " sc1")
    A("s_waitcnt vmcnt(0)")
    mark(A, 10, sL, 150)
    unpack(A, R, X, 24)
    ln_stats(A, X, tmp)
    E, O = 92, 116
    for i in range(3):
        for m in range(0, 8, 2):
            xa, xb = v(X + 16 * i + m, 2), v(X + 16 * i + 8 + 6 - m, 2)
            A(f"v_pk_add_f32 {v(E+8*i+m,2)}, {xa}, {xb} op_sel:[0,1] op_sel_hi:[1,0]")
            A(f"v_pk_add_f32 {v(O+8*i+m,2)}, {xa}, {xb} op_sel:[0,1] op_sel_hi:[1,0] neg_lo:[0,1] neg_hi:[0,1]")
    for r in range(0, 48, 2):
        A(f"v_pk_mul_f32 {v(E+r,2)}, {v(E+r,2)}, {v(tmp,2)} op_sel_hi:[1,0]")
    for r in range(24):
        A(f"v_cvt_pk_bf16_f32 {v(R+r)}, {v(E+2*r)}, {v(E+2*r+1)}")
    A(f"s_mov_b64 exec, {s(sAct,2)}")
    for i in range(3):
        A(f"ds_write_b128 v7, {v(R+4*i,4)} offset:{192*i}")
        A(f"ds_write_b128 v7, {v(R+12+4*i,4)} offset:{16*ERS + 192*i}")
    A("s_mov_b64 exec, -1")
    A("s_waitcnt lgkmcnt(0)")
    A("s_barrier")
    mark(A, 11, sL, 150)
    F, ACC = 16, 52
    for t in range(9):
        A(f"ds_read_b128 {v(F+4*t,4)}, v8 offset:{64*t}")
    for t in range(9):
        A(f"s_waitcnt lgkmcnt({8-t})")
        for q in range(9):
            d = v(ACC + 4 * q, 4)
            A(f"v_mfma_f32_16x16x32_bf16 {d}, {v(F+4*t,4)}, {T(q,t)}, {'0' if t == 0 else d}")
    A(f"s_mul_i32 {s(sT)}, {s(sL)}, {XSZ}")
    A(f"s_lshl_b32 {s(sT2)}, {s(sHS)}, 6")
    A(f"s_add_u32 {s(sT)}, {s(sT)}, {s(sT2)}")
    A(f"s_lshl_b32 {s(sT2)}, {s(S_WAVE)}, 17")
    A(f"s_add_u32 {s(sT)}, {s(sT)}, {s(sT2)}")
    A(f"s_add_u32 {s(sT)}, {s(sT)}, {XF:#x}")
    A("v_lshrrev_b32 v14, 2, v0")
    A("v_and_b32 v15, 3, v0")
    A("v_lshlrev_b32 v15, 4, v15")
    A(f"s_mul_i32 {s(sT2)}, {s(S_WAVE)}, {16*80}")
    A(f"s_add_u32 {s(sT2)}, {s(sT2)}, {D_XO}")
    A("v_mul_u32_u24 v16, 80, v14")
    A(f"v_add3_u32 v16, v16, v15, {s(sT2)}")
    A("v_lshl_add_u32 v14, v14, 13, v15")
    mark(A, 12, sL, 150)
    for q in range(9):
        z = ACC + 4 * q
        A(f"v_cvt_pk_bf16_f32 {v(z)}, {v(z)}, {v(z+1)}")
        A(f"v_cvt_pk_bf16_f32 {v(z+1)}, {v(z+2)}, {v(z+3)}")
        A(f"ds_write_b64 v9, {v(z,2)} offset:{16*80*q}")
    A("s_waitcnt lgkmcnt(0)")
    A("s_barrier")
    for i in range(5):
        A(f"ds_read_b128 {v(20+4*i,4)}, v16 offset:{64*80*i}")
    sk = A.newlabel("f5")
    for i in range(5):
        if i == 4:
            A(f"s_cmp_ge_u32 {s(S_WAVE)}, 2")
            A(f"s_cbranch_scc1 {sk}")
        A(f"s_waitcnt lgkmcnt({4-i})")
        A(f"buffer_store_dwordx4 {v(20+4*i,4)}, v14, {s(S_WS,4)}, {s(sT)} offen sc1")
        A(f"s_add_u32 {s(sT)}, {s(sT)}, {64*8192}")
    A.label(sk)
    A("s_waitcnt lgkmcnt(0)")
    A(f"s_lshl_b32 {s(sT)}, {s(sL)}, 20")
    A(f"s_lshl_b32 {s(sT2)}, {s(sHS)}, 7")
    A(f"s_add_u32 {s(sT)}, {s(sT)}, {s(sT2)}")
    publish(A, sT, FLG + F_X, 14)

def inv_gather(A, job, hs):
    A("v_lshrrev_b32 v14, 2, v0")
    A("v_lshlrev_b32 v14, 13, v14")
    A("v_and_b32 v15, 3, v0")
    A("v_lshl_add_u32 v14, v15, 4, v14")
    A(f"s_mul_i32 {s(sT)}, {s(sL)}, {XSZ}")
    A(f"s_lshl_b32 {s(sT2)}, {s(hs)}, 6")
    A(f"s_add_u32 {s(sT)}, {s(sT)}, {s(sT2)}")
    A(f"s_min_u32 {s(sT2)}, {s(S_WAVE)}, 1")
    A(f"s_lshl_b32 {s(sT3)}, {s(sT2)}, 17")
    A(f"s_add_u32 {s(sT3)}, {s(sT3)}, {s(sT)}")
    A(f"s_add_u32 {s(sT3)}, {s(sT3)}, {YF + 4*64*8192:#x}")
    A(f"s_lshl_b32 {s(sK+5)}, {s(sT2)}, 10")
    A(f"s_lshl_b32 {s(sT2)}, {s(S_WAVE)}, 17")
    A(f"s_add_u32 {s(sT)}, {s(sT)}, {s(sT2)}")
    A(f"s_add_u32 {s(sT)}, {s(sT)}, {YF:#x}")
    A(f"s_lshl_b32 {s(sT2)}, {s(S_WAVE)}, 10")
    def go():
        for i in range(4):
            A(f"s_add_u32 m0, {s(sT2)}, {D_Y + YB*job + 4096*i}")
            A(f"buffer_load_dwordx4 v14, {s(S_WS,4)}, {s(sT)} offen sc1 lds")
            A(f"s_add_u32 {s(sT)}, {s(sT)}, {64*8192}")
        A(f"s_add_u32 m0, {s(sK+5)}, {D_Y + YB*job + 16384}")
        A(f"buffer_load_dwordx4 v14, {s(S_WS,4)}, {s(sT3)} offen sc1 lds")
    return go

def inv_rows(A):
    A(f"s_mul_i32 {s(sT)}, {s(sL)}, {XSZ}")
    A(f"s_mul_i32 {s(sRow)}, {s(sHS)}, {16*1152}")
    A(f"s_add_u32 {s(sT3)}, {s(sT)}, {s(sRow)}")
    A(f"s_add_u32 {s(sT3)}, {s(sT3)}, {X1:#x}")
    load_rows(A, 128, S_WS, sT3, " sc1")

def mark_first(A, idx, vt):
    import common
    if not common.MARKS: return
    sk = A.newlabel("mf")
    A(f"s_cmp_lg_u32 {s(sJob)}, 0")
    A(f"s_cbranch_scc1 {sk}")
    mark(A, idx, sL, vt)
    A.label(sk)

def inv_job(A, opt):
    R, X, tmp = 128, 40, 88
    mark(A, 10, sL, 154); mark_first(A, 32, 154)
    sk = A.newlabel("g2"); sk2 = A.newlabel("g3")
    A(f"s_cmp_lg_u32 {s(sJob)}, 0")
    A(f"s_cbranch_scc1 {sk}")
    A(f"s_add_u32 {s(sK+4)}, {s(sHS)}, {s(sStep)}")
    inv_gather(A, 1, sK + 4)()
    A(f"s_branch {sk2}")
    A.label(sk)
    inv_rows(A)
    A.label(sk2)
    A(f"s_mul_i32 {s(sT)}, {s(sJob)}, {YB}")
    A(f"v_add_u32 v14, {s(sT)}, v10")
    F, ACC = 16, 52
    for t in range(9):
        for j in range(2):
            A(f"ds_read_b64_tr_b16 {v(F+4*t+2*j,2)}, v14 offset:{(32*t+4*j)*64}")
        if t == 6: A("s_waitcnt lgkmcnt(8)")
    for t in range(9):
        A(f"s_waitcnt lgkmcnt({min(15, 2*(8-t))})")
        for q in range(9):
            d = v(ACC + 4 * q, 4)
            A(f"v_mfma_f32_16x16x32_bf16 {d}, {T(q,t)}, {v(F+4*t,4)}, {'0' if t == 0 else d}")
    for q in range(9):
        A(f"ds_write_b128 v11, {v(ACC+4*q,4)} offset:{64*q}")
    A("s_waitcnt lgkmcnt(0)")
    A("s_barrier")
    mark(A, 11, sL, 154); mark_first(A, 33, 154)
    E, O = 16, 92
    for i in range(3):
        for hf in range(2):
            A(f"ds_read_b128 {v(E+8*i+4*hf,4)}, v1 offset:{384*i + 16*hf}")
            A(f"ds_read_b128 {v(O+8*i+4*hf,4)}, v1 offset:{16*EOS + 384*i + 16*hf}")
    A("s_waitcnt vmcnt(0)")
    unpack(A, R, X, 24)
    A("s_waitcnt lgkmcnt(0)")
    Y = 116
    for i in range(3):
        for m in range(0, 8, 2):
            e, o = v(E + 8 * i + m, 2), v(O + 8 * i + m, 2)
            A(f"v_pk_add_f32 {v(Y,2)}, {e}, {o} neg_lo:[0,1] neg_hi:[0,1]")
            A(f"v_pk_add_f32 {v(Y+2,2)}, {e}, {o}")
            A(f"v_cvt_pk_bf16_f32 {v(Y)}, {v(Y)}, {v(Y+1)}")
            A(f"v_cvt_pk_bf16_f32 {v(Y+2)}, {v(Y+3)}, {v(Y+2)}")
            A(f"v_and_b32 {v(Y+1)}, 0xffff0000, {v(Y)}")
            A(f"v_lshlrev_b32 {v(Y)}, 16, {v(Y)}")
            A(f"v_and_b32 {v(Y+3)}, 0xffff0000, {v(Y+2)}")
            A(f"v_lshlrev_b32 {v(Y+2)}, 16, {v(Y+2)}")
            xa, xb = X + 16 * i + m, X + 16 * i + 8 + 6 - m
            A(f"v_pk_add_f32 {v(xa,2)}, {v(xa,2)}, {v(Y,2)}")
            A(f"v_pk_add_f32 {v(xb,2)}, {v(xb,2)}, {v(Y+2,2)}")
    for r in range(24):
        A(f"v_cvt_pk_bf16_f32 {v(R+r)}, {v(X+2*r)}, {v(X+2*r+1)}")
    mark(A, 12, sL, 154); mark_first(A, 34, 154)
    last = A.newlabel("ilast"); done = A.newlabel("idone")
    A(f"s_cmp_eq_u32 {s(sL)}, {opt.layers - 1}")
    A(f"s_cbranch_scc1 {last}")
    A(f"s_add_u32 {s(sT)}, {s(sRow)}, {X2:#x}")
    store_rows(A, R, S_WS, sT, " sc1")
    unpack(A, R, X, 24)
    ln_stats(A, X, tmp)
    mark_first(A, 35, 154)
    emit_xn(A, X, tmp, 16, 1)
    A(f"s_branch {done}")
    A.label(last)
    store_rows(A, R, S_B, sRow, "")
    A("s_barrier")
    A.label(done)

FSLEEP = [1, 0]
def dworker(A, opt):
    FSLEEP[0] = opt.dsleep; FSLEEP[1] = opt.osleep
    A("s_mul_i32 s6, s5, 14")
    A("s_add_u32 s6, s6, s4")
    A("s_sub_u32 s7, s6, 18")
    A("s_cmp_eq_u32 s5, 3")
    A(f"s_cselect_b32 {s(sRD)}, s6, s7")
    A(f"s_cmp_ge_u32 {s(sRD)}, 72")
    A("s_cbranch_scc1 L_exit")
    A(f"s_load_dwordx2 s[80:81], s[0:1], {KA_X}")
    A(f"s_load_dwordx4 s[84:87], s[0:1], {KA_WR}")
    A(f"s_load_dwordx2 s[82:83], s[0:1], {KA_OUT}")
    A(f"s_cmp_lt_u32 {s(sRD)}, 8")
    A(f"s_cselect_b32 {s(sIsF)}, 1, 0")
    A(f"s_lshl_b32 {s(sCol)}, {s(sRD)}, 2")
    A(f"s_add_u32 {s(sCol)}, {s(sCol)}, {s(S_WAVE)}")
    A("v_and_b32 v12, 15, v0")
    A("v_lshrrev_b32 v13, 4, v0")
    A("v_lshlrev_b32 v6, 4, v0")
    A(f"v_cmp_gt_u32 {s(sAct,2)}, 12, v12")
    A(f"s_lshl_b32 {s(sT)}, {s(S_WAVE)}, 2")
    A(f"v_add_u32 v14, {s(sT)}, v13")
    A("v_mov_b32 v16, 0x7ff00000")
    A("v_mul_u32_u24 v15, 1152, v14")
    A("v_lshl_add_u32 v2, v12, 4, v15")
    A("v_sub_u32 v17, 47, v12")
    A("v_lshl_add_u32 v3, v17, 4, v15")
    A(f"v_cndmask_b32 v2, v16, v2, {s(sAct,2)}")
    A(f"v_cndmask_b32 v3, v16, v3, {s(sAct,2)}")
    A(f"s_and_b32 {s(sT)}, {s(S_WAVE)}, 1")
    A(f"s_lshl_b32 {s(sT)}, {s(sT)}, 10")
    A(f"s_lshr_b32 {s(sT2)}, {s(S_WAVE)}, 1")
    A(f"s_lshl_b32 {s(sT2)}, {s(sT2)}, 6")
    A(f"s_add_u32 {s(sT)}, {s(sT)}, {s(sT2)}")
    A("v_lshlrev_b32 v18, 4, v13")
    A(f"v_add_u32 v18, {s(sT)}, v18")
    for dst, src in ((4, 12), (5, 17)):
        A(f"v_lshrrev_b32 v19, 2, {v(src)}")
        A(f"v_lshl_add_u32 {v(dst)}, v19, 11, v18")
        A(f"v_and_b32 v19, 3, {v(src)}")
        A(f"v_lshl_add_u32 {v(dst)}, v19, 8, {v(dst)}")
        A(f"v_cndmask_b32 {v(dst)}, v16, {v(dst)}, {s(sAct,2)}")
    A(f"v_mul_u32_u24 v7, {ERS}, v14")
    A("v_lshl_add_u32 v7, v12, 4, v7")
    A(f"v_add_u32 v7, {D_E}, v7")
    A(f"s_lshr_b32 {s(sT2)}, {s(S_WAVE)}, 1")
    A(f"s_mul_i32 {s(sT)}, {s(sT2)}, {16*ERS}")
    A(f"s_add_u32 {s(sT)}, {s(sT)}, {D_E}")
    A(f"v_mul_u32_u24 v8, {ERS}, v12")
    A("v_lshl_add_u32 v8, v13, 4, v8")
    A(f"v_add_u32 v8, {s(sT)}, v8")
    A(f"s_and_b32 {s(sT)}, {s(S_WAVE)}, 1")
    A(f"s_mul_i32 {s(sT3)}, {s(sT)}, {144*80}")
    A(f"s_lshl_b32 {s(sRow)}, {s(sT2)}, 5")
    A(f"s_add_u32 {s(sT3)}, {s(sT3)}, {s(sRow)}")
    A(f"s_add_u32 {s(sT3)}, {s(sT3)}, {D_XO}")
    A("v_mul_u32_u24 v9, 80, v12")
    A("v_lshl_add_u32 v9, v13, 3, v9")
    A(f"v_add_u32 v9, {s(sT3)}, v9")
    A("v_bfe_u32 v19, v0, 2, 2")
    A("v_lshl_add_u32 v10, v13, 3, v19")
    A("v_lshlrev_b32 v10, 6, v10")
    A("v_and_b32 v19, 3, v0")
    A("v_lshl_add_u32 v10, v19, 3, v10")
    A(f"s_add_u32 {s(sRow)}, {s(sRow)}, {D_Y}")
    A(f"v_add_u32 v10, {s(sRow)}, v10")
    A(f"s_mul_i32 {s(sT3)}, {s(sT2)}, {16*EOS}")
    A(f"s_mul_i32 {s(sRow)}, {s(sT)}, 576")
    A(f"s_add_u32 {s(sT3)}, {s(sT3)}, {s(sRow)}")
    A(f"s_add_u32 {s(sT3)}, {s(sT3)}, {D_EO}")
    A(f"v_mul_u32_u24 v11, {EOS}, v12")
    A("v_lshl_add_u32 v11, v13, 4, v11")
    A(f"v_add_u32 v11, {s(sT3)}, v11")
    A(f"v_mul_u32_u24 v1, {EOS}, v14")
    A("v_min_u32 v19, 11, v12")
    A("v_lshl_add_u32 v1, v19, 5, v1")
    A(f"v_add_u32 v1, {D_EO}, v1")
    A("s_waitcnt lgkmcnt(0)")
    build_srd(A, S_A, 80, XSZ)
    build_srd(A, S_B, 82, XSZ)
    build_srd(A, S_C, 84, 2048 * 289 * 2)
    build_srd(A, S_D, 86, 2048 * 289 * 2)
    A(f"s_mov_b32 {s(sL)}, 0")
    A(f"s_mov_b32 {s(sHS)}, {s(sRD)}")
    A(f"s_mul_i32 {s(sT)}, {s(sHS)}, {16*1152}")
    load_rows(A, 16, S_A, sT, "")
    wait_init(A, 88)
    A.label("L_d_ln0")
    A("s_waitcnt vmcnt(0)")
    unpack(A, 16, 40, 24)
    ln_stats(A, 40, 88)
    emit_xn(A, 40, 88, 16, 0)
    A(f"s_add_u32 {s(sHS)}, {s(sHS)}, 72")
    A(f"s_cmp_ge_u32 {s(sHS)}, 128")
    A("s_cbranch_scc1 L_d_ln0done")
    A(f"s_mul_i32 {s(sT)}, {s(sHS)}, {16*1152}")
    load_rows(A, 16, S_A, sT, "")
    A("s_branch L_d_ln0")
    A.label("L_d_ln0done")
    mark(A, 1, None, 16)
    gen_tables(A)
    A("s_barrier")
    A.label("L_d_layer")
    mark(A, 2, sL, 16)
    A(f"s_cmp_eq_u32 {s(sIsF)}, 0")
    A("s_cbranch_scc1 L_d_fft")
    A(f"s_mov_b32 {s(sHS)}, {s(sRD)}")
    A.label("L_d_fwd")
    fwd_job(A)
    A(f"s_add_u32 {s(sHS)}, {s(sHS)}, 8")
    A(f"s_cmp_lt_u32 {s(sHS)}, 128")
    A("s_cbranch_scc1 L_d_fwd")
    A.label("L_d_fft")
    mark(A, 4, sL, 16)
    fft_job(A)
    mark(A, 6, sL, 16)
    A(f"s_cmp_lg_u32 {s(sIsF)}, 0")
    A("s_cbranch_scc1 L_d_next")
    A(f"s_sub_u32 {s(sHS)}, {s(sRD)}, 8")
    A(f"s_lshl_b32 {s(sT)}, {s(sHS)}, 1")
    A(f"s_cmp_eq_u32 {s(sL)}, {opt.layers - 1}")
    A(f"s_cselect_b32 {s(sHS)}, {s(sT)}, {s(sHS)}")
    A(f"s_cselect_b32 {s(sStep)}, 1, 64")
    A(f"s_mov_b32 {s(sJob)}, 0")
    inv_rows(A)
    go = inv_gather(A, 0, sHS)
    A(f"s_lshl_b32 {s(sK+4)}, {s(sL)}, 20")
    A(f"s_add_u32 {s(sK+4)}, {s(sK+4)}, {FLG + F_Y:#x}")
    wait_flags(A, sK + 4, 72, 16, sleep=0)
    go()
    mark(A, 7, sL, 16)
    A("s_waitcnt vmcnt(0)")
    A("s_barrier")
    A.label("L_d_inv")
    mark(A, 8, sL, 16)
    inv_job(A, opt)
    A(f"s_add_u32 {s(sHS)}, {s(sHS)}, {s(sStep)}")
    A(f"s_add_u32 {s(sJob)}, {s(sJob)}, 1")
    A(f"s_cmp_lt_u32 {s(sJob)}, 2")
    A("s_cbranch_scc1 L_d_inv")
    A.label("L_d_next")
    mark(A, 9, sL, 16)
    A(f"s_add_u32 {s(sL)}, {s(sL)}, 1")
    A(f"s_cmp_lt_u32 {s(sL)}, {opt.layers}")
    A("s_cbranch_scc1 L_d_layer")
    A("s_branch L_exit")
```

```python
from common import *
from pwork import load_frag_weights, wait_init, set_flag

sG, sB, sL, sHS, sT, sPA, sPB, sT2, sPar, sRow = range(41, 51)

def oworker(A, opt):
    A(f"s_load_dwordx2 s[80:81], s[0:1], {KA_WO}")
    A(f"s_load_dwordx2 s[82:83], s[0:1], {KA_X}")
    A("v_and_b32 v12, 15, v0")
    A("v_lshrrev_b32 v13, 4, v0")
    A(f"v_mul_u32_u24 v15, {8*1152}, v13")
    A("v_lshl_add_u32 v15, v12, 2, v15")
    A(f"s_mul_i32 {s(sT)}, {s(S_WAVE)}, {1024*1152}")
    A(f"s_lshl_b32 {s(sT2)}, {s(sB)}, 6")
    A(f"s_add_u32 {s(sT)}, {s(sT)}, {s(sT2)}")
    A(f"v_add_u32 v15, {s(sT)}, v15")
    A(f"s_mov_b32 {s(sPA)}, 0x05040100")
    A(f"s_mov_b32 {s(sPB)}, 0x07060302")
    A("s_waitcnt lgkmcnt(0)")
    build_srd(A, S_A, 80, 576 * 4096 * 2)
    build_srd(A, S_B, 82, XSZ)
    load_frag_weights(A, list(range(32)), lambda k: S_A, lambda k, i: (32 * k + i) * 1152,
                      lambda k, par, d: ("a", (k * 2 + par) * 4 + d), 15, sPA, sPB, sT)
    A("v_lshlrev_b32 v6, 4, v0")
    A("v_and_b32 v2, 7, v0")
    A("v_lshlrev_b32 v2, 7, v2")
    A(f"s_lshl_b32 {s(sT)}, {s(S_WAVE)}, 10")
    A(f"v_add_u32 v2, {s(sT)}, v2")
    A("v_mul_u32_u24 v3, 1152, v12")
    A("v_lshl_add_u32 v3, v13, 4, v3")
    A(f"v_add_u32 v3, {s(sT2)}, v3")
    A(f"s_lshl_b32 {s(sT)}, {s(S_WAVE)}, 11")
    A(f"v_add_u32 v4, {s(sT)}, v6")
    wait_init(A, 16)
    A(f"s_mov_b32 {s(sL)}, 0")
    A(f"s_mov_b32 {s(sPar)}, 0")
    A.label("L_o_layer")
    mark(A, 1, sL, 16)
    A(f"s_mov_b32 {s(sHS)}, {s(sG)}")
    A.label("L_o_loop")
    A(f"s_lshr_b32 {s(sT)}, {s(sHS)}, 1")
    A(f"s_lshl_b32 {s(sT)}, {s(sT)}, 12")
    A(f"s_lshl_b32 {s(sT2)}, {s(sL)}, 20")
    A(f"s_add_u32 {s(sT)}, {s(sT)}, {s(sT2)}")
    A(f"s_add_u32 {s(sT)}, {s(sT)}, {FLG + F_O:#x}")
    A(f"s_mov_b32 {s(S_CNT)}, 0")
    lp = A.newlabel("of")
    A.label(lp)
    spin_check(A)
    if opt.osleep: A(f"s_sleep {opt.osleep}")
    A(f"buffer_load_dword v16, v2, {s(S_WS,4)}, {s(sT)} offen sc1")
    A("s_waitcnt vmcnt(0)")
    A("v_cmp_eq_u32 vcc, 0, v16")
    A(f"s_cbranch_vccnz {lp}")
    mark(A, 2, sL, 16)
    A(f"s_lshl_b32 {s(sT)}, {s(sHS)}, 17")
    A(f"s_lshl_b32 {s(sT2)}, {s(S_WAVE)}, 15")
    A(f"s_add_u32 {s(sT)}, {s(sT)}, {s(sT2)}")
    A(f"s_lshl_b32 {s(sT2)}, {s(sL)}, 24")
    A(f"s_add_u32 {s(sT)}, {s(sT)}, {s(sT2)}")
    A(f"s_add_u32 {s(sT)}, {s(sT)}, {OF:#x}")
    for t in range(32):
        A(f"buffer_load_dwordx4 {v(64+4*t,4)}, v6, {s(S_WS,4)}, {s(sT)} offen offset:{1024*(t%4)} sc1")
        if t % 4 == 3: A(f"s_add_u32 {s(sT)}, {s(sT)}, 4096")
    A(f"s_mul_i32 {s(sRow)}, {s(sHS)}, {16*1152}")
    l1 = A.newlabel("ol1"); lj = A.newlabel("olj")
    A(f"s_cmp_lg_u32 {s(sL)}, 0")
    A(f"s_cbranch_scc1 {l1}")
    A(f"buffer_load_dwordx4 v[24:27], v3, {s(S_B,4)}, {s(sRow)} offen")
    A(f"s_branch {lj}")
    A.label(l1)
    A(f"s_add_u32 {s(sT)}, {s(sRow)}, {X2:#x}")
    A(f"buffer_load_dwordx4 v[24:27], v3, {s(S_WS,4)}, {s(sT)} offen sc1")
    A.label(lj)
    for t in range(32):
        A(f"s_waitcnt vmcnt({32-t})")
        for par in range(2):
            d = v(16 + 4 * par, 4)
            A(f"v_mfma_f32_16x16x32_bf16 {d}, {a((t*2+par)*4,4)}, {v(64+4*t,4)}, {'0' if t == 0 else d}")
    mark(A, 4, sL, 30)
    A(f"v_add_u32 v5, {s(sPar)}, v4")
    A("ds_write_b128 v5, v[16:19]")
    A("ds_write_b128 v5, v[20:23] offset:1024")
    A("s_waitcnt lgkmcnt(0)")
    A("s_barrier")
    A(f"s_cmp_lg_u32 {s(S_WAVE)}, 0")
    A("s_cbranch_scc1 L_o_next")
    for w in range(1, 4):
        A(f"ds_read_b128 {v(24+8*w,4)}, v5 offset:{2048*w}")
        A(f"ds_read_b128 {v(28+8*w,4)}, v5 offset:{2048*w+1024}")
    A("s_waitcnt lgkmcnt(0)")
    for r in range(0, 8, 2):
        A(f"v_pk_add_f32 {v(16+r,2)}, {v(16+r,2)}, {v(32+r,2)}")
        A(f"v_pk_add_f32 {v(40+r,2)}, {v(40+r,2)}, {v(48+r,2)}")
    for r in range(0, 8, 2):
        A(f"v_pk_add_f32 {v(16+r,2)}, {v(16+r,2)}, {v(40+r,2)}")
    A("s_waitcnt vmcnt(0)")
    for r in range(4):
        A(f"v_cvt_pk_bf16_f32 {v(16+r)}, {v(16+r)}, {v(20+r)}")
    for r in range(4):
        A(f"v_lshlrev_b32 v32, 16, {v(16+r)}")
        A(f"v_and_b32 v33, 0xffff0000, {v(16+r)}")
        A(f"v_lshlrev_b32 v34, 16, {v(24+r)}")
        A(f"v_and_b32 v35, 0xffff0000, {v(24+r)}")
        A("v_pk_add_f32 v[32:33], v[32:33], v[34:35]")
        A(f"v_cvt_pk_bf16_f32 {v(16+r)}, v32, v33")
    A(f"s_mul_i32 {s(sT)}, {s(sL)}, {XSZ}")
    A(f"s_add_u32 {s(sT)}, {s(sT)}, {s(sRow)}")
    A(f"s_add_u32 {s(sT)}, {s(sT)}, {X1:#x}")
    A(f"buffer_store_dwordx4 v[16:19], v3, {s(S_WS,4)}, {s(sT)} offen sc1")
    A(f"s_mul_i32 {s(sT)}, {s(sHS)}, 18")
    A(f"s_add_u32 {s(sT)}, {s(sT)}, {s(sB)}")
    A(f"s_lshl_b32 {s(sT)}, {s(sT)}, 7")
    A(f"s_lshl_b32 {s(sT2)}, {s(sL)}, 20")
    A(f"s_add_u32 {s(sT)}, {s(sT)}, {s(sT2)}")
    A(f"s_add_u32 {s(sT)}, {s(sT)}, {FLG + F_X1:#x}")
    A("s_waitcnt vmcnt(0)")
    set_flag(A, sT, 32)
    mark(A, 3, sL, 16)
    A.label("L_o_next")
    A(f"s_xor_b32 {s(sPar)}, {s(sPar)}, 8192")
    A(f"s_add_u32 {s(sHS)}, {s(sHS)}, 3")
    A(f"s_cmp_lt_u32 {s(sHS)}, 128")
    A("s_cbranch_scc1 L_o_loop")
    A(f"s_add_u32 {s(sL)}, {s(sL)}, 1")
    A(f"s_cmp_lt_u32 {s(sL)}, {opt.layers}")
    A("s_cbranch_scc1 L_o_layer")
    A("s_branch L_exit")
```

```python
from common import *
from chain import f2u
import math

P_XN = 0
P_BUF = 36864
P_BUFSZ = 25600
P_M = P_BUF + 2 * P_BUFSZ
P_KM = P_M + 9216

sH, sJ, sL, sN, sSeg, sT, sPA, sPB, sNC1, sBuf, sKV, sFl, sPiece, sCnt, sXN = range(41, 56)
sT2 = 56
sC1 = 60
sOnes = 62
sNeg = 64

def W(mat, t, par):
    i = ((mat * 18 + t) * 2 + par) * 4
    return a(i, 4) if i < 256 else v(80 + i - 256, 4)
def Wreg(mat, t, par, d):
    i = ((mat * 18 + t) * 2 + par) * 4 + d
    return ("a", i) if i < 256 else ("v", 80 + i - 256)

def load_frag_weights(A, jobs, srd_of, soff_of, home, voff, sPA, sPB, sT, ring0=16, depth=6):
    def issue(n):
        base = ring0 + 8 * (n % (depth + 1))
        for i in range(8):
            A(f"s_mov_b32 {s(sT)}, {soff_of(jobs[n], i):#x}")
            A(f"buffer_load_dword {v(base + i)}, {v(voff)}, {s(srd_of(jobs[n]),4)}, {s(sT)} offen")
    def fix(n):
        base = ring0 + 8 * (n % (depth + 1))
        for par, sel in ((0, sPA), (1, sPB)):
            for d in range(4):
                f, r = home(jobs[n], par, d)
                if f == "a":
                    tmp = 1 + (d & 1)
                    A(f"v_perm_b32 {v(tmp)}, {v(base+2*d+1)}, {v(base+2*d)}, {s(sel)}")
                    A(f"v_accvgpr_write_b32 {a(r)}, {v(tmp)}")
                else:
                    A(f"v_perm_b32 {v(r)}, {v(base+2*d+1)}, {v(base+2*d)}, {s(sel)}")
    for n in range(depth):
        issue(n)
    for n in range(len(jobs)):
        if n + depth < len(jobs):
            issue(n + depth)
            A(f"s_waitcnt vmcnt({8*depth})")
        else:
            A(f"s_waitcnt vmcnt({8*(len(jobs)-1-n)})")
        fix(n)

def wait_init(A, tmp):
    lp = A.newlabel("wi")
    A(f"s_mov_b32 {s(S_CNT)}, 0")
    A.label(lp)
    spin_check(A)
    A(f"buffer_load_dword {v(tmp)}, off, {s(S_DBG,4)}, 0 offset:64 sc1")
    A("s_waitcnt vmcnt(0)")
    A(f"v_cmp_ne_u32 vcc, 0x100, {v(tmp)}")
    A(f"s_cbranch_vccnz {lp}")

def set_flag(A, soff, tmp, imm=0):
    A(f"v_mov_b32 {v(tmp)}, 1")
    A("s_mov_b64 exec, 1")
    A(f"buffer_store_dword {v(tmp)}, off, {s(S_WS,4)}, {s(soff)} offset:{imm} sc1")
    A("s_mov_b64 exec, -1")

def softmax12(A, x0, x1, m, tA, sC1, sNC1):
    tB = tA + 1
    A(f"v_max3_f32 v{tA}, {v(x0)}, {v(x0+1)}, {v(x0+2)}")
    A(f"v_max3_f32 v{tB}, {v(x0+3)}, {v(x1)}, {v(x1+1)}")
    A(f"v_max3_f32 v{tA}, v{tA}, {v(x1+2)}, {v(x1+3)}")
    A(f"v_max3_f32 v{tB}, v{tB}, {v(m)}, {v(m+1)}")
    A(f"v_max3_f32 v{tA}, v{tA}, {v(m+2)}, {v(m+3)}")
    A(f"v_max_f32 v{tA}, v{tA}, v{tB}")
    A(f"v_mov_b32 v{tB}, v{tA}")
    A(f"v_permlane32_swap_b32 v{tA}, v{tB}")
    A(f"v_max_f32 v{tA}, v{tA}, v{tB}")
    A(f"v_mov_b32 v{tB}, v{tA}")
    A(f"v_permlane16_swap_b32 v{tA}, v{tB}")
    A(f"v_max_f32 v{tA}, v{tA}, v{tB}")
    A(f"v_mul_f32 v{tA}, {s(sNC1)}, v{tA}")
    for r in (x0, x0 + 2, x1, x1 + 2, m, m + 2):
        A(f"v_pk_fma_f32 {v(r,2)}, {v(r,2)}, {s(sC1,2)}, {v(tA,2)} op_sel_hi:[1,1,0]")
    for b in (x0, x1, m):
        for i in range(4):
            A(f"v_exp_f32 {v(b+i)}, {v(b+i)}")

def pworker(A, opt):
    lq = Q(A, "lgkmcnt", 15)
    A(f"s_sub_u32 {s(sT)}, {s(S_ROLE)}, 32")
    A(f"s_mul_i32 {s(sH)}, {s(sT)}, 21846")
    A(f"s_lshr_b32 {s(sH)}, {s(sH)}, 16")
    A(f"s_mul_i32 {s(sJ)}, {s(sH)}, 3")
    A(f"s_sub_u32 {s(sJ)}, {s(sT)}, {s(sJ)}")
    A(f"s_load_dwordx4 s[80:83], s[0:1], {KA_WQ}")
    A(f"s_load_dwordx2 s[84:85], s[0:1], {KA_WV}")
    A("v_and_b32 v12, 15, v0")
    A("v_lshrrev_b32 v13, 4, v0")
    A(f"s_lshl_b32 {s(sT)}, {s(sH)}, 8")
    A(f"s_lshl_b32 {s(sT2)}, {s(S_WAVE)}, 6")
    A(f"s_add_u32 {s(sT)}, {s(sT)}, {s(sT2)}")
    A("v_lshlrev_b32 v15, 16, v13")
    A("v_lshl_add_u32 v15, v12, 2, v15")
    A(f"v_add_u32 v15, {s(sT)}, v15")
    A(f"s_mov_b32 {s(sPA)}, 0x05040100")
    A(f"s_mov_b32 {s(sPB)}, 0x07060302")
    A("s_waitcnt lgkmcnt(0)")
    for i, d in enumerate((S_A, S_B, S_C)):
        build_srd(A, d, 80 + 2 * i, 576 * 4096 * 2)
    vq = Q(A, "vmcnt", 63)
    NS = 9
    jobs = [(m, p) for m in (1, 2, 0) for p in range(9)]
    A("v_lshlrev_b32 v8, 13, v13")
    A("v_lshl_add_u32 v8, v12, 4, v8")
    A(f"s_lshl_b32 {s(sT)}, {s(sH)}, 8")
    A(f"s_lshl_b32 {s(sT2+1)}, {s(S_WAVE)}, 17")
    A(f"s_add_u32 {s(sT)}, {s(sT)}, {s(sT2+1)}")
    A(f"v_add_u32 v8, {s(sT)}, v8")
    A(f"s_lshl_b32 {s(sT2+1)}, {s(S_WAVE)}, 12")
    A("v_lshlrev_b32 v10, 11, v13")
    A("v_lshl_add_u32 v10, v12, 2, v10")
    A(f"v_add_u32 v10, {s(sT2)}, v10")
    def dma(n):
        m, p = jobs[n]
        for i in range(4):
            A(f"s_mov_b32 {s(sT)}, {(64 * p + 4 * i) * 8192:#x}")
            A(f"s_add_u32 m0, {s(sT2+1)}, {16384 * (1 + n % NS) + 1024 * i}")
            A(f"buffer_load_dwordx4 v8, {s((S_A, S_B, S_C)[m],4)}, {s(sT)} offen lds"); vq.push(n)
    for n in range(NS - 1): dma(n)
    for n, (m, p) in enumerate(jobs):
        vq.wait(n)
        A("s_barrier")
        if n + NS - 1 < len(jobs): dma(n + NS - 1)
        A(f"v_add_u32 v11, {16384 * (1 + n % NS)}, v10")
        for j in range(0, 16, 2):
            r = 32 * (j >> 3) + (j & 7)
            A(f"ds_read2st64_b32 {v(16+j,2)}, v11 offset0:{r} offset1:{r+1}")
        A("s_waitcnt lgkmcnt(0)")
        for k in range(2):
            for par, sel in ((0, sPA), (1, sPB)):
                for d in range(4):
                    f, r = Wreg(m, 2 * p + k, par, d)
                    b = 16 + 8 * k + 2 * d
                    if f == "a":
                        tmp = 1 + (d & 1)
                        A(f"v_perm_b32 {v(tmp)}, {v(b+1)}, {v(b)}, {s(sel)}")
                        A(f"v_accvgpr_write_b32 {a(r)}, {v(tmp)}")
                    else:
                        A(f"v_perm_b32 {v(r)}, {v(b+1)}, {v(b)}, {s(sel)}")
    A("v_lshlrev_b32 v6, 4, v0")
    A("v_lshrrev_b32 v1, 2, v12")
    A("v_lshlrev_b32 v1, 3, v1")
    A("v_and_b32 v2, 3, v12")
    A("v_add_u32 v1, v1, v2")
    A("v_mul_u32_u24 v2, 288, v1")
    A("v_lshl_add_u32 v2, v13, 4, v2")
    A(f"s_lshl_b32 {s(sT)}, {s(S_WAVE)}, 6")
    A(f"v_add_u32 v2, {s(sT)}, v2")
    A("v_mul_u32_u24 v3, 288, v12")
    A("v_lshl_add_u32 v3, v13, 4, v3")
    A(f"s_lshl_b32 {s(sT)}, {s(S_WAVE)}, 11")
    A(f"v_add_u32 v4, {s(sT)}, v6")
    A("v_and_b32 v1, 7, v0")
    A("v_lshlrev_b32 v5, 7, v13")
    A("v_lshl_add_u32 v5, v1, 4, v5")
    A(f"v_add_u32 v5, {P_M}, v5")
    A("v_lshlrev_b32 v1, 3, v13")
    A("v_sub_u32 v7, v12, v1")
    A(f"s_mov_b32 {s(sNeg)}, {f2u(-1e30):#x}")
    A("v_cmp_gt_u32 vcc, 2, v13")
    A(f"v_mov_b32 v8, {s(sNeg)}")
    A("v_cndmask_b32 v8, v8, 0, vcc")
    A(f"s_mul_i32 {s(sPiece)}, {s(S_WAVE)}, 2304")
    A("v_lshlrev_b32 v9, 2, v0")
    c1 = 128 ** -0.5 * math.log2(math.e)
    A(f"s_mov_b32 {s(sC1)}, {f2u(c1):#x}")
    A(f"s_mov_b32 {s(sC1+1)}, {f2u(c1):#x}")
    A(f"s_mov_b32 {s(sNC1)}, {f2u(-c1):#x}")
    A(f"s_mov_b32 {s(sOnes)}, 0x3f803f80")
    A(f"s_mov_b32 {s(sOnes+1)}, 0x3f803f80")
    A(f"s_cmp_eq_u32 {s(sJ)}, 0")
    A(f"s_cselect_b32 {s(sCnt)}, 22, 21")
    wait_init(A, 16)
    A(f"s_mov_b32 {s(sL)}, 0")

    def fetch_xn(seg_sgpr):
        A(f"s_lshl_b32 {s(sT)}, {s(sL)}, 20")
        A(f"s_lshl_b32 {s(sT2)}, {s(seg_sgpr)}, 8")
        A(f"s_add_u32 {s(sT)}, {s(sT)}, {s(sT2)}")
        A(f"s_add_u32 {s(sT)}, {s(sT)}, {FLG + F_XN:#x}")
        wait_flags(A, sT, 2, 16)
        A(f"s_mul_i32 {s(sT)}, {s(sL)}, {XSZ}")
        A(f"s_mul_i32 {s(sT2)}, {s(seg_sgpr)}, 36864")
        A(f"s_add_u32 {s(sT)}, {s(sT)}, {s(sT2)}")
        A(f"s_mul_i32 {s(sT2)}, {s(S_WAVE)}, 9216")
        A(f"s_add_u32 {s(sT)}, {s(sT)}, {s(sT2)}")
        A(f"s_add_u32 {s(sT)}, {s(sT)}, {XN:#x}")
        for i in range(9):
            if i % 4 == 0:
                A(f"s_add_u32 m0, {s(sT2)}, {P_XN + 1024*i}")
                if i: A(f"s_add_u32 {s(sT)}, {s(sT)}, 4096")
            A(f"buffer_load_dwordx4 v6, {s(S_WS,4)}, {s(sT)} offen offset:{1024*(i%4)} sc1 lds")

    A.label("L_p_layer")
    mark(A, 1, sL, 16)
    A(f"s_mov_b32 {s(sN)}, 0")
    A(f"s_mov_b32 {s(sSeg)}, {s(sJ)}")
    fetch_xn(sSeg)
    mark(A, 2, sL, 16)
    A.label("L_p_loop")
    A(f"s_cmp_ge_u32 {s(sN)}, {s(sCnt)}")
    A("s_cbranch_scc1 L_p_attn")
    A(f"s_and_b32 {s(sT)}, {s(sN)}, 1")
    A(f"s_mul_i32 {s(sBuf)}, {s(sT)}, {P_BUFSZ}")
    A(f"s_add_u32 {s(sBuf)}, {s(sBuf)}, {P_BUF}")
    A(f"s_lshl_b32 {s(sT)}, {s(sSeg)}, 5")
    A(f"s_add_u32 {s(sT)}, {s(sT)}, {s(sH)}")
    A(f"s_lshl_b32 {s(sFl)}, {s(sH)}, 6")
    A(f"s_add_u32 {s(sFl)}, {s(sFl)}, {s(sSeg)}")
    A(f"s_lshl_b32 {s(sFl)}, {s(sFl)}, 7")
    A(f"s_lshl_b32 {s(sT2)}, {s(sL)}, 20")
    A(f"s_add_u32 {s(sFl)}, {s(sFl)}, {s(sT2)}")
    A(f"s_add_u32 {s(sFl)}, {s(sFl)}, {FLG + F_KV:#x}")
    A(f"s_lshl_b32 {s(sKV)}, {s(sT)}, 13")
    A(f"s_lshl_b32 {s(sT2)}, {s(sL)}, 24")
    A(f"s_add_u32 {s(sKV)}, {s(sKV)}, {s(sT2)}")
    A(f"s_add_u32 {s(sT2)}, {s(sKV)}, {KF:#x}")
    A(f"s_add_u32 {s(sT2+1)}, {s(sKV)}, {VF:#x}")
    A(f"v_add_u32 v10, {s(sBuf)}, v4")
    A(f"v_add_u32 v11, {s(sBuf)}, v2")
    A("s_waitcnt vmcnt(0)")
    A("s_barrier")
    def mark0(idx):
        sk0 = A.newlabel("mk")
        import common
        if not common.MARKS: return
        A(f"s_cmp_lg_u32 {s(sN)}, 0")
        A(f"s_cbranch_scc1 {sk0}")
        mark(A, idx, sL, 14)
        A.label(sk0)
    mark0(6)
    def acc(mat, i, par): return 32 + ((mat * 2 + i) * 2 + par) * 4
    def xr(t, i): return 16 + ((t & 1) * 2 + i) * 4
    def rdx(t):
        for i in range(2):
            A(f"ds_read_b128 {v(xr(t,i),4)}, v6 offset:{P_XN + (2*t+i)*1024}"); lq.push(("x", t, i))
    def ppass(mats, mid=None):
        lq.reset()
        rdx(0); rdx(1)
        for t in range(18):
            for i in range(2):
                lq.wait(("x", t, i))
                for mat in mats:
                    for par in range(2):
                        d = v(acc(mat, i, par), 4); c = "0" if t == 0 else d
                        if mat == 2:
                            A(f"v_mfma_f32_16x16x32_bf16 {d}, {v(xr(t,i),4)}, {W(mat,t,par)}, {c}")
                        else:
                            A(f"v_mfma_f32_16x16x32_bf16 {d}, {W(mat,t,par)}, {v(xr(t,i),4)}, {c}")
                if t + 2 < 18:
                    A(f"ds_read_b128 {v(xr(t,i),4)}, v6 offset:{P_XN + (2*(t+2)+i)*1024}"); lq.push(("x", t + 2, i))
            if mid and t == opt.pmid: mid()
    ppass((1, 2))
    mark0(7)
    for i in range(2):
        e, o = acc(1, i, 0), acc(1, i, 1)
        for r in range(4):
            A(f"v_cvt_pk_bf16_f32 {v(e+r)}, {v(e+r)}, {v(o+r)}")
        A(f"buffer_store_dwordx4 {v(e,4)}, v4, {s(S_WS,4)}, {s(sT2)} offen offset:{1024*i} sc1")
        A(f"ds_write_b128 v10, {v(e,4)} offset:{9216 + 1024*i}")
    for par in range(2):
        d0, d1 = acc(2, 0, par), acc(2, 1, par)
        A(f"v_cvt_pk_bf16_f32 {v(d0)}, {v(d0)}, {v(d0+1)}")
        A(f"v_cvt_pk_bf16_f32 {v(d0+1)}, {v(d0+2)}, {v(d0+3)}")
        A(f"v_cvt_pk_bf16_f32 {v(d0+2)}, {v(d1)}, {v(d1+1)}")
        A(f"v_cvt_pk_bf16_f32 {v(d0+3)}, {v(d1+2)}, {v(d1+3)}")
        A(f"buffer_store_dwordx4 {v(d0,4)}, v4, {s(S_WS,4)}, {s(sT2+1)} offen offset:{1024*par} sc1")
        A(f"ds_write_b128 v10, {v(d0,4)} offset:{9216 + 8192 + 1024*par}")
    A("s_waitcnt lgkmcnt(0)")
    def publish():
        sk = A.newlabel("pf")
        A("s_waitcnt vmcnt(0)")
        A("s_barrier")
        A(f"s_cmp_lg_u32 {s(S_WAVE)}, 0")
        A(f"s_cbranch_scc1 {sk}")
        set_flag(A, sFl, 14)
        A.label(sk)
    def touch():
        if not opt.touch: return
        A("v_lshlrev_b32 v15, 3, v6")
        A(f"s_cmp_eq_u32 {s(S_WAVE)}, 2")
        A(f"s_cselect_b32 {s(sT)}, {s(sT2)}, {s(sT2+1)}")
        sk = A.newlabel("tch")
        A(f"s_cmp_lt_u32 {s(S_WAVE)}, 2")
        A(f"s_cbranch_scc1 {sk}")
        A(f"buffer_load_dword v15, v15, {s(S_WS,4)}, {s(sT)} offen sc1")
        A.label(sk)
    ppass((0,), lambda: (publish(), touch(), mark0(8)))
    if opt.touch: A("s_waitcnt vmcnt(0)")
    for i in range(2):
        e, o = acc(0, i, 0), acc(0, i, 1)
        for r in range(4):
            A(f"v_cvt_pk_bf16_f32 {v(e+r)}, {v(e+r)}, {v(o+r)}")
        A(f"ds_write_b128 v11, {v(e,4)} offset:{4*288*i}")
    A("s_waitcnt lgkmcnt(0)")
    A("s_barrier")
    if 1:
        sk0 = A.newlabel("mk")
        A(f"s_cmp_lg_u32 {s(sN)}, 0")
        A(f"s_cbranch_scc1 {sk0}")
        mark(A, 3, sL, 16)
        A.label(sk0)
    A(f"s_add_u32 {s(sXN)}, {s(sSeg)}, 3")
    A(f"s_cmp_ge_u32 {s(sXN)}, 64")
    A("s_cbranch_scc1 L_p_attn")
    fetch_xn(sXN)
    A.label("L_p_attn")
    A(f"s_cmp_eq_u32 {s(sN)}, 0")
    A("s_cbranch_scc1 L_p_next")
    A(f"s_sub_u32 {s(sXN)}, {s(sSeg)}, 3")
    A(f"s_and_b32 {s(sT)}, {s(sN)}, 1")
    A(f"s_xor_b32 {s(sT)}, {s(sT)}, 1")
    A(f"s_mul_i32 {s(sBuf)}, {s(sT)}, {P_BUFSZ}")
    A(f"s_add_u32 {s(sBuf)}, {s(sBuf)}, {P_BUF}")
    A(f"v_add_u32 v10, {s(sBuf)}, v6")
    A(f"v_add_u32 v11, {s(sBuf)}, v3")
    def SX(ip, tt): return 64 + (ip * 2 + tt) * 4
    def SM(ip): return 56 + ip * 4
    for ip in range(2):
        for tt in range(2):
            for r in range(4):
                A(f"v_cmp_le_i32 vcc, {4*tt + r - 16*ip}, v7")
                A(f"v_mov_b32 {v(SX(ip,tt)+r)}, {s(sNeg)}")
                A(f"v_cndmask_b32 {v(SX(ip,tt)+r)}, {v(SX(ip,tt)+r)}, 0, vcc")
    lq.reset()
    def rd_s(t):
        b = 16 + 16 * (t & 1)
        for tt in range(2):
            A(f"ds_read_b128 {v(b+4*tt,4)}, v10 offset:{9216 + (2*t+tt)*1024}"); lq.push(("s", t))
        for ip in range(2):
            A(f"ds_read_b128 {v(b+8+4*ip,4)}, v11 offset:{16*288*ip + 64*t}"); lq.push(("s", t))
    rd_s(0); rd_s(1)
    for t in range(4):
        b = 16 + 16 * (t & 1)
        lq.wait(("s", t))
        for ip in range(2):
            for tt in range(2):
                A(f"v_mfma_f32_16x16x32_bf16 {v(SX(ip,tt),4)}, {v(b+4*tt,4)}, {v(b+8+4*ip,4)}, {v(SX(ip,tt),4)}")
        if t + 2 < 4: rd_s(t + 2)
    A(f"s_lshl_b32 {s(sT)}, {s(sL)}, 6")
    A(f"s_add_u32 {s(sT)}, {s(sT)}, {s(sXN)}")
    A(f"s_mul_i32 {s(sT)}, {s(sT)}, {MENT}")
    A(f"s_add_u32 {s(sT)}, {s(sT)}, {s(sPiece)}")
    A(f"s_add_u32 {s(sT)}, {s(sT)}, {MARCH:#x}")
    A(f"s_add_u32 {s(sT2)}, {s(sPiece)}, {P_M}")
    A(f"v_add_u32 v14, {s(sT2)}, v6")
    A(f"v_add_u32 v15, {s(sT2)}, v9")
    A(f"s_mov_b32 {s(S_CNT)}, 0")
    lp = A.newlabel("pm")
    A.label(lp)
    spin_check(A)
    if opt.psleep: A(f"s_sleep {opt.psleep}")
    A(f"buffer_load_dwordx4 v[16:19], v6, {s(S_WS,4)}, {s(sT)} offen sc1")
    A(f"buffer_load_dwordx4 v[20:23], v6, {s(S_WS,4)}, {s(sT)} offen offset:1024 sc1")
    A(f"buffer_load_dword v24, v9, {s(S_WS,4)}, {s(sT)} offen offset:2048 sc1")
    A("s_waitcnt vmcnt(0)")
    A("v_max3_u32 v25, v16, v17, v18")
    A("v_max3_u32 v25, v25, v19, v20")
    A("v_max3_u32 v25, v25, v21, v22")
    A("v_max3_u32 v25, v25, v23, v24")
    A("v_cmp_eq_u32 vcc, -1, v25")
    A(f"s_cbranch_vccnz {lp}")
    mark(A, 4, sL, 25)
    A("ds_write_b128 v14, v[16:19]")
    A("ds_write_b128 v14, v[20:23] offset:1024")
    A("ds_write_b32 v15, v24 offset:2048")
    A("s_waitcnt lgkmcnt(0)")
    A("s_barrier")
    lq.reset()
    def rdm(t):
        A(f"ds_read_b128 {v(16+4*(t&3),4)}, v5 offset:{512*t}"); lq.push(("m", t))
    for t in range(4): rdm(t)
    for t in range(18):
        lq.wait(("m", t))
        x = v(16 + 4 * (t & 3), 4)
        for par in range(2):
            d = v(32 + 4 * par, 4); A(f"v_mfma_f32_16x16x32_bf16 {d}, {W(1,t,par)}, {x}, {'0' if t == 0 else d}")
        for par in range(2):
            d = v(40 + 4 * par, 4); A(f"v_mfma_f32_16x16x32_bf16 {d}, {x}, {W(2,t,par)}, {'0' if t == 0 else d}")
        if t + 4 < 18: rdm(t + 4)
    for ip in range(2):
        for r in range(4):
            A(f"v_mov_b32 {v(SM(ip)+r)}, v8")
    A(f"s_lshl_b32 {s(sT)}, {s(S_WAVE)}, 10")
    A(f"s_add_u32 {s(sT)}, {s(sT)}, {P_KM}")
    A(f"v_add_u32 v14, {s(sT)}, v6")
    for r in range(4):
        A(f"v_cvt_pk_bf16_f32 {v(32+r)}, {v(32+r)}, {v(36+r)}")
    A("ds_write_b128 v14, v[32:35]")
    A("v_cvt_pk_bf16_f32 v40, v40, v41")
    A("v_cvt_pk_bf16_f32 v41, v42, v43")
    A("v_cvt_pk_bf16_f32 v42, v44, v45")
    A("v_cvt_pk_bf16_f32 v43, v46, v47")
    A(f"v_add_u32 v15, {P_KM}, v6")
    A(f"v_add_u32 v10, {s(sBuf)}, v4")
    A("s_waitcnt lgkmcnt(0)")
    A("s_barrier")
    lq.reset()
    def rd_m2(t):
        b = 16 + 12 * (t & 1)
        A(f"ds_read_b128 {v(b,4)}, v15 offset:{1024*t}"); lq.push(("k", t))
        for ip in range(2):
            A(f"ds_read_b128 {v(b+4+4*ip,4)}, v11 offset:{16*288*ip + 64*t}"); lq.push(("k", t))
    rd_m2(0); rd_m2(1)
    for par in range(2):
        A(f"ds_read_b128 {v(48+4*par,4)}, v10 offset:{9216 + 8192 + 1024*par}"); lq.push("v")
    for t in range(4):
        b = 16 + 12 * (t & 1)
        lq.wait(("k", t))
        for ip in range(2):
            A(f"v_mfma_f32_16x16x32_bf16 {v(SM(ip),4)}, {v(b,4)}, {v(b+4+4*ip,4)}, {v(SM(ip),4)}")
        if t + 2 < 4: rd_m2(t + 2)
    A(f"v_mov_b64 v[44:45], {s(sOnes,2)}")
    A(f"v_mov_b64 v[46:47], {s(sOnes,2)}")
    A(f"s_lshl_b32 {s(sT)}, {s(sXN)}, 8")
    A(f"s_lshl_b32 {s(sT2)}, {s(sH)}, 2")
    A(f"s_add_u32 {s(sT)}, {s(sT)}, {s(sT2)}")
    A(f"s_add_u32 {s(sT)}, {s(sT)}, {s(S_WAVE)}")
    A(f"s_lshl_b32 {s(sT)}, {s(sT)}, 10")
    A(f"s_lshl_b32 {s(sT2)}, {s(sL)}, 24")
    A(f"s_add_u32 {s(sT)}, {s(sT)}, {s(sT2)}")
    A(f"s_add_u32 {s(sT)}, {s(sT)}, {OF:#x}")
    lq.drain()
    for ip in range(2):
        x0, x1, m = SX(ip, 0), SX(ip, 1), SM(ip)
        softmax12(A, x0, x1, m, 14, sC1, sNC1)
        A(f"v_cvt_pk_bf16_f32 {v(m)}, {v(m)}, {v(m+1)}")
        A(f"v_cvt_pk_bf16_f32 {v(m+1)}, {v(m+2)}, {v(m+3)}")
        A(f"v_cvt_pk_bf16_f32 {v(x0)}, {v(x0)}, {v(x0+1)}")
        A(f"v_cvt_pk_bf16_f32 {v(x0+1)}, {v(x0+2)}, {v(x0+3)}")
        A(f"v_cvt_pk_bf16_f32 {v(x0+2)}, {v(x1)}, {v(x1+1)}")
        A(f"v_cvt_pk_bf16_f32 {v(x0+3)}, {v(x1+2)}, {v(x1+3)}")
        b = 16 + 12 * ip
        A(f"v_mfma_f32_16x16x16_bf16 {v(b,4)}, v[44:45], {v(m,2)}, 0")
        A(f"v_mfma_f32_16x16x16_bf16 {v(b+4,4)}, v[40:41], {v(m,2)}, 0")
        A(f"v_mfma_f32_16x16x16_bf16 {v(b+8,4)}, v[42:43], {v(m,2)}, 0")
        A(f"v_mfma_f32_16x16x32_bf16 {v(b,4)}, v[44:47], {v(x0,4)}, {v(b,4)}")
        A(f"v_mfma_f32_16x16x32_bf16 {v(b+4,4)}, v[48:51], {v(x0,4)}, {v(b+4,4)}")
        A(f"v_mfma_f32_16x16x32_bf16 {v(b+8,4)}, v[52:55], {v(x0,4)}, {v(b+8,4)}")
    for ip in range(2):
        b = 16 + 12 * ip
        A(f"v_rcp_f32 {v(b)}, {v(b)}")
        for r in range(4, 12, 2):
            A(f"v_pk_mul_f32 {v(b+r,2)}, {v(b+r,2)}, {v(b,2)} op_sel_hi:[1,0]")
        for r in range(4):
            A(f"v_cvt_pk_bf16_f32 {v(b+4+r)}, {v(b+4+r)}, {v(b+8+r)}")
        A(f"buffer_store_dwordx4 {v(b+4,4)}, v6, {s(S_WS,4)}, {s(sT)} offen sc1")
        if ip == 0: A(f"s_add_u32 {s(sT)}, {s(sT)}, {128*1024}")
    A(f"s_lshl_b32 {s(sT)}, {s(sXN)}, 5")
    A(f"s_add_u32 {s(sT)}, {s(sT)}, {s(sH)}")
    A(f"s_lshl_b32 {s(sFl)}, {s(sT)}, 7")
    A(f"s_lshl_b32 {s(sT2)}, {s(sL)}, 20")
    A(f"s_add_u32 {s(sFl)}, {s(sFl)}, {s(sT2)}")
    A(f"s_add_u32 {s(sFl)}, {s(sFl)}, {FLG + F_O:#x}")
    publish()
    mark(A, 5, sL, 16)
    A.label("L_p_next")
    A(f"s_add_u32 {s(sSeg)}, {s(sSeg)}, 3")
    A(f"s_add_u32 {s(sN)}, {s(sN)}, 1")
    A(f"s_cmp_le_u32 {s(sN)}, {s(sCnt)}")
    A("s_cbranch_scc1 L_p_loop")
    A(f"s_add_u32 {s(sL)}, {s(sL)}, 1")
    A(f"s_cmp_lt_u32 {s(sL)}, {opt.layers}")
    A("s_cbranch_scc1 L_p_layer")
    A("s_branch L_exit")
```

```python
import sys, argparse
from common import *
import chain, pwork, owork

L_ROLE = 16256

def entry(A, opt):
    A("s_cmp_ge_u32 s2, 256")
    A("s_cbranch_scc1 L_exit")
    if opt.marks: A("s_memrealtime s[96:97]")
    A(f"s_load_dwordx4 s[36:39], s[0:1], {KA_DBG}")
    A(f"s_load_dwordx2 s[34:35], s[0:1], {KA_MEM0}")
    A("v_lshrrev_b32 v1, 6, v0")
    A("s_getreg_b32 s3, hwreg(HW_REG_XCC_ID)")
    A(f"v_readfirstlane_b32 {s(S_WAVE)}, v1")
    A("s_and_b32 s3, s3, 7")
    A("s_waitcnt lgkmcnt(0)")
    build_srd(A, S_DBG, 36, 256)
    build_srd(A, S_WS, 38, WS_SIZE)
    build_srd(A, S_A, 34, 9216)
    A("v_and_b32 v0, 63, v0")
    A(f"v_mov_b32 v4, {L_ROLE}")
    A(f"s_cmp_eq_u32 {s(S_WAVE)}, 3")
    A("s_cbranch_scc1 L_init")
    A(f"s_cmp_lg_u32 {s(S_WAVE)}, 0")
    A("s_cbranch_scc1 L_entry_join")
    A("s_lshl_b32 s4, s3, 2")
    A("s_add_u32 s4, s4, 128")
    A("s_cmp_eq_u32 s3, 0")
    A("s_cselect_b32 s4, 0, s4")
    A("v_mov_b32 v2, 1")
    A("s_mov_b64 exec, 1")
    A(f"buffer_atomic_add v2, off, {s(S_DBG,4)}, s4 sc0")
    A("s_mov_b64 exec, -1")
    A("s_waitcnt vmcnt(0)")
    A("v_readfirstlane_b32 s5, v2")
    A("s_lshl_b32 s6, s3, 5")
    A("s_add_u32 s6, s6, s5")
    A("s_cmp_ge_u32 s5, 32")
    A("s_cbranch_scc1 L_overflow")
    A.label("L_have_role")
    A("v_mov_b32 v2, s6")
    A("ds_write_b32 v4, v2")
    A("s_waitcnt lgkmcnt(0)")
    A("s_branch L_entry_join")
    A.label("L_overflow")
    A("v_and_b32 v2, 7, v0")
    A("v_lshlrev_b32 v3, 2, v2")
    A("v_add_u32 v3, 128, v3")
    A("v_cmp_ne_u32 vcc, 0, v2")
    A("v_cndmask_b32 v3, 0, v3, vcc")
    A(f"s_mov_b32 {s(S_CNT)}, 0")
    A.label("L_ov_wait")
    spin_check(A, "L_ov_fail")
    A(f"buffer_load_dword v2, v3, {s(S_DBG,4)}, 0 offen sc1")
    A("s_waitcnt vmcnt(0)")
    A("s_mov_b32 s7, 0")
    for x in range(8):
        A(f"v_readlane_b32 s{44+x}, v2, {x}")
        A(f"s_add_u32 s7, s7, s{44+x}")
    A("s_cmp_lt_u32 s7, 256")
    A("s_cbranch_scc1 L_ov_wait")
    A("s_cmp_gt_u32 s7, 256")
    A("s_cbranch_scc1 L_ov_fail")
    A("s_sub_u32 s5, s5, 32")
    for x in range(8):
        A(f"s_max_u32 s7, s{44+x}, 32")
        A("s_sub_u32 s7, s7, 32")
        A(f"s_cmp_gt_u32 s3, {x}")
        A("s_cselect_b32 s7, s7, 0")
        A("s_add_u32 s5, s5, s7")
    for x in range(8):
        A(f"s_min_u32 s7, s{44+x}, 32")
        A("s_add_u32 s6, s7, s5")
        A(f"s_add_u32 s6, s6, {32*x}")
        A("s_sub_u32 s7, 32, s7")
        A("s_cmp_lt_u32 s5, s7")
        A("s_cbranch_scc1 L_have_role")
        A("s_sub_u32 s5, s5, s7")
    A.label("L_ov_fail")
    A("s_mov_b32 s6, 0x100")
    A("s_branch L_have_role")
    A.label("L_init")
    A("v_lshlrev_b32 v3, 4, v0")
    for i in range(24):
        A(f"v_mov_b32 {v(8+i)}, -1")
    A("s_lshr_b32 s5, s2, 1")
    A("s_and_b32 s6, s2, 1")
    A("s_and_b32 s7, s5, 63")
    A("s_cmp_lg_u32 s7, 0")
    A("s_cbranch_scc1 L_nomem0")
    A("s_mul_i32 s7, s6, 288")
    A("v_add_u32 v5, s7, v0")
    A("v_and_b32 v6, 7, v5")
    A("v_mul_u32_u24 v6, 1152, v6")
    A("v_lshrrev_b32 v5, 3, v5")
    A("v_lshl_add_u32 v5, v5, 4, v6")
    for i in range(5):
        A(f"buffer_load_dwordx4 {v(8+4*i,4)}, v5, {s(S_A,4)}, 0 offen offset:{128*i}")
    A("s_waitcnt vmcnt(0)")
    for i in range(20):
        A(f"v_min_u32 {v(8+i)}, -2, {v(8+i)}")
    A.label("L_nomem0")
    A("s_mul_i32 s7, s2, 4608")
    A(f"s_add_u32 s7, s7, {MARCH:#x}")
    A("s_mul_i32 s5, s2, 2816")
    A(f"s_add_u32 s5, s5, {MCH:#x}")
    for i in range(4):
        A(f"buffer_store_dwordx4 {v(8+4*i,4)}, v3, {s(S_WS,4)}, s7 offen offset:{1024*i} sc1")
    for i in range(2):
        A(f"buffer_store_dwordx4 v[28:31], v3, {s(S_WS,4)}, s5 offen offset:{1024*i} sc1")
    A("s_mov_b32 exec_hi, 0")
    A("s_add_u32 s7, s7, 4096")
    A(f"buffer_store_dwordx4 v[24:27], v3, {s(S_WS,4)}, s7 offen sc1")
    A("s_mov_b32 exec_hi, 0xffff")
    A(f"buffer_store_dwordx4 v[28:31], v3, {s(S_WS,4)}, s5 offen offset:2048 sc1")
    A("s_mov_b32 exec_hi, -1")
    if not opt.noflags:
        A("s_lshl_b32 s7, s2, 13")
        A(f"s_add_u32 s7, s7, {FLG:#x}")
        A("v_lshlrev_b32 v5, 7, v0")
        A("v_mov_b32 v6, 0")
        A(f"buffer_store_dword v6, v5, {s(S_WS,4)}, s7 offen sc1")
    A.label("L_entry_join")
    A("s_barrier")
    A("ds_read_b32 v2, v4")
    A(f"s_cmp_lg_u32 {s(S_WAVE)}, 3")
    A("s_cbranch_scc1 L_noarr")
    A("s_waitcnt vmcnt(0)")
    A("v_mov_b32 v5, 1")
    A("s_mov_b64 exec, 1")
    A(f"buffer_atomic_add v5, off, {s(S_DBG,4)}, 0 offset:64")
    A("s_mov_b64 exec, -1")
    A.label("L_noarr")
    A("s_waitcnt lgkmcnt(0)")
    A(f"v_readfirstlane_b32 {s(S_ROLE)}, v2")
    A(f"s_cmp_ge_u32 {s(S_ROLE)}, 0x100")
    A("s_cbranch_scc1 L_abort")

def entry2(A, opt):
    pass

def main():
    ap = argparse.ArgumentParser()
    ap.add_argument("-o", default=f"cdna_kernels/{NAME}.s")
    ap.add_argument("--noflags", action="store_true")
    ap.add_argument("--diag", action="store_true")
    ap.add_argument("--slow", action="store_true")
    ap.add_argument("--stamps", action="store_true")
    ap.add_argument("--exp", default="dbl,dblA,v2late,dA8")
    ap.add_argument("--layers", type=int, default=2)
    ap.add_argument("--roles", default="CPOD")
    ap.add_argument("--keepxn", action="store_true")
    ap.add_argument("--marks", action="store_true")
    ap.add_argument("--pmid", type=int, default=6)
    ap.add_argument("--noalign", action="store_true")
    ap.add_argument("--touch", action="store_true")
    ap.add_argument("--osleep", type=int, default=1)
    ap.add_argument("--psleep", type=int, default=2)
    ap.add_argument("--dsleep", type=int, default=16)
    opt = ap.parse_args()
    import common
    common.MARKS = opt.marks
    A = Asm()
    K = NAME + "_kernel"
    A.label(K)
    entry(A, opt)
    mark(A, 0, None, 16)
    if opt.marks:
        A("v_mov_b32 v16, s96")
        A(f"buffer_store_dword v16, off, {s(S_WS,4)}, s98 offset:60")
    A(f"s_cmp_ge_u32 {s(S_ROLE)}, 128")
    A("s_cbranch_scc1 L_role_od")
    A(f"s_cmp_ge_u32 {s(S_ROLE)}, 32")
    A("s_cbranch_scc1 L_role_p")
    if "C" not in opt.roles:
        A("s_branch L_exit")
    sc = " sc1" if opt.slow else ""
    if opt.diag:
        A("s_memrealtime s[96:97]")
    chain.chain_setup(A)
    chain.chain_weights(A)
    mark(A, 4, None, 16)
    chain.chain_consts(A, opt.exp)
    A(f"s_mov_b32 {s(S_CNT)}, 0")
    A.label("L_c_rdy")
    spin_check(A)
    A(f"buffer_load_dword v16, off, {s(S_DBG,4)}, 0 sc1")
    A(f"buffer_load_dword v17, off, {s(S_DBG,4)}, 0 offset:64 sc1")
    A("s_waitcnt vmcnt(0)")
    A("v_cmp_ne_u32 vcc, 0x100, v17")
    A("s_cbranch_vccnz L_c_rdy")
    A(f"buffer_load_dword v16, off, {s(S_DBG,4)}, 0 sc1")
    chain.chain_touch(A)
    A("s_waitcnt vmcnt(0)")
    A("v_readfirstlane_b32 s2, v16")
    A("s_barrier")
    if opt.diag:
        A("s_memrealtime s[98:99]")
        A("s_waitcnt lgkmcnt(0)")
    A(f"s_cmp_lt_u32 s2, {64 if opt.slow else 32}")
    A("s_cbranch_scc1 L_c_slow")
    chain.chain_loop(A, "", "f", diag=opt.stamps, exp=opt.exp, nlayers=opt.layers)
    A("s_branch L_c_fin")
    A.label("L_c_slow")
    chain.chain_loop(A, " sc1", "s", diag=opt.stamps, exp=opt.exp, nlayers=opt.layers)
    A.label("L_c_fin")
    if opt.diag:
        A("s_memrealtime s[100:101]")
        A("s_waitcnt lgkmcnt(0)")
        A(f"s_lshl_b32 s4, {s(chain.sH)}, 4")
        A(f"s_add_u32 s4, s4, {DBGW:#x}")
        for i, r in enumerate((96, 98, 100)):
            A(f"v_mov_b32 v16, s{r}")
            A(f"buffer_store_dword v16, off, {s(S_WS,4)}, s4 offset:{4*i}")
    A("s_branch L_exit")
    A.label("L_abort")
    A("s_nop 7")
    A("v_mov_b32 v16, 0xdead")
    A(f"buffer_store_dword v16, off, {s(S_DBG,4)}, 0 offset:60")
    A.label("L_exit")
    A("s_endpgm")
    A.label("L_role_p")
    if "P" in opt.roles:
        pwork.pworker(A, opt)
    else:
        A("s_branch L_exit")
    A.label("L_role_od")
    A(f"s_and_b32 s4, {s(S_ROLE)}, 31")
    A(f"s_lshr_b32 s5, {s(S_ROLE)}, 5")
    A("s_sub_u32 s5, s5, 4")
    A("s_cmp_eq_u32 s5, 3")
    A("s_cbranch_scc1 L_role_d")
    A("s_cmp_ge_u32 s4, 18")
    A("s_cbranch_scc1 L_role_d")
    A(f"s_mov_b32 {s(owork.sG)}, s5")
    A(f"s_mov_b32 {s(owork.sB)}, s4")
    if "O" in opt.roles:
        owork.oworker(A, opt)
    else:
        A("s_branch L_exit")
    A.label("L_role_d")
    if "D" in opt.roles:
        import dwork
        dwork.dworker(A, opt)
    else:
        A("s_branch L_exit")
    bad = A.check_branches()
    for b in bad: print("WARN", b, file=sys.stderr)
    hdr = open(f"cdna_kernels/{NAME}.s.ref").read().split("; Override launch")[0]
    pre = hdr + "; @launch grid=(256,1,1) block=(256,1,1) lds=163840\n"
    pre += f'.amdgcn_target "amdgcn-amd-amdhsa--gfx950"\n.text\n.globl {K}\n.p2align 8\n.type {K},@function\n'
    post = f'''.section .rodata,"a"
.p2align 6
.amdhsa_kernel {K}
  .amdhsa_next_free_vgpr 512
  .amdhsa_next_free_sgpr 102
  .amdhsa_accum_offset 256
  .amdhsa_group_segment_fixed_size 0
  .amdhsa_kernarg_size 104
  .amdhsa_user_sgpr_count 2
  .amdhsa_user_sgpr_kernarg_segment_ptr 1
  .amdhsa_system_sgpr_workgroup_id_x 1
  .amdhsa_float_denorm_mode_32 3
.end_amdhsa_kernel
'''
    if not opt.noalign:
        print("promoted:", align_pass(A, lambda x: pre + x + post), file=sys.stderr)
    out = pre + A.text() + post
    open(opt.o, "w").write(out)
    print("instructions:", len(A.ins), "padded wait states:", A.padded, file=sys.stderr)

main()
```

```python
from common import *
import math, struct

def f2u(x):
    return struct.unpack("<I", struct.pack("<f", x))[0]

L_M = 0
L_QKX = 9216
L_ZX = L_QKX + 4608
L_KX = 16384
L_W = 24576
ROWP = 288

sH, sL, sS, sMsrc, sKx, sVx, sW64, sRed, sKl, sMr, sMdW, sFlag, sIsRed, sWb, sFive, sPA, sPB = range(41, 58)
sMaskLo = 58
sSel = 60
sNC1 = 68
sPar = 69
sU = 70
sPiece = 71
sBlk0 = 72
sT = 73
sC1 = 78
sStamp = 80
sPB0 = 4
sRB0 = 5
sU7 = 6
sN = 7
sHalf = 30
sOnes = 34
sFl = 3
sMpo = 37
sClr = 38
sCl0 = 36
sPS = 16
sArc = 39
sOwn = 23
sFlN = 24
FAR = 0x70000000

WOK = "LLLLRRRRRRLLLRRRLLLL"
def QK1(t): return a(16 * (t - 4), 8)
def QK2(t): return a(16 * (t - 4) + 8, 8)
def VW(p, par): return v(112 + 16 * p + 8 * par, 8)
def WoR(i): return (a, 224 + 8 * i) if i < 4 else (v, 72 + 8 * (i - 4))

def chain_setup(A):
    A(f"s_mov_b32 {s(sH)}, {s(S_ROLE)}")
    A(f"s_load_dwordx8 s[80:87], s[0:1], {KA_WQ}")
    A("v_and_b32 v12, 15, v0")
    A("v_lshrrev_b32 v13, 4, v0")
    A("v_and_b32 v14, 7, v0")
    A(f"s_lshl_b32 {s(sT)}, {s(sH)}, 8")
    A(f"s_lshl_b32 {s(sW64)}, {s(S_WAVE)}, 6")
    A(f"s_add_u32 {s(sT)}, {s(sT)}, {s(sW64)}")
    A("v_lshlrev_b32 v15, 15, v13")
    A(f"v_lshl_add_u32 v15, v12, 2, v15")
    A(f"v_add_u32 v15, {s(sT)}, v15")
    A(f"s_mov_b32 {s(sPA)}, 0x05040100")
    A(f"s_mov_b32 {s(sPB)}, 0x07060302")
    A(f"s_mul_i32 {s(sBlk0)}, {s(S_WAVE)}, 5")
    A(f"s_lshl_b32 {s(sT)}, {s(S_WAVE)}, 2")
    A(f"s_add_u32 {s(sT)}, {s(sT)}, 2")
    A(f"s_cmp_lt_u32 {s(S_WAVE)}, 2")
    A(f"s_cselect_b32 {s(sBlk0)}, {s(sBlk0)}, {s(sT)}")
    A(f"s_cselect_b32 {s(sFive)}, 1, 0")
    A("v_lshlrev_b32 v6, 4, v0")
    A(f"s_lshl_b32 {s(sT)}, {s(sBlk0)}, 2")
    A(f"s_sub_u32 {s(sT)}, {s(sT)}, {s(S_WAVE)}")
    A(f"s_lshl_b32 {s(sT)}, {s(sT)}, 11")
    A(f"s_add_u32 {s(sWb)}, {s(sT)}, {L_W}")
    A(f"v_add_u32 v7, {s(sWb)}, v6")
    A("s_waitcnt lgkmcnt(0)")
    for i, d in enumerate((S_A, S_B, S_C, S_D)):
        build_srd(A, d, 80 + 2 * i, 576 * 4096 * 2)

def chain_weights(A):
    vq = Q(A, "vmcnt", 63)
    slots = [0] + [L_W + 2048 * k for k in (0, 19, 38, 53)]
    NS = len(slots)
    jobs = [("qk", t) for t in range(4, 18)] + [("v", p) for p in range(9)] + [("qk", t) for t in range(4)]
    A(f"s_cmp_ge_u32 {s(S_WAVE)}, 2")
    A(f"s_cselect_b32 {s(S_A)}, {s(S_B)}, {s(S_A)}")
    A(f"s_cselect_b32 {s(S_A+1)}, {s(S_B+1)}, {s(S_A+1)}")
    A("v_lshlrev_b32 v8, 13, v13")
    A("v_lshl_add_u32 v8, v12, 4, v8")
    A(f"s_lshl_b32 {s(sT)}, {s(sH)}, 8")
    A(f"s_lshl_b32 {s(sT+1)}, {s(S_WAVE)}, 17")
    A(f"s_add_u32 {s(sT+1)}, {s(sT+1)}, {s(sT)}")
    A(f"v_add_u32 v9, {s(sT+1)}, v8")
    A(f"s_and_b32 {s(sT+1)}, {s(sT+1)}, 0x3ffff")
    A(f"v_add_u32 v8, {s(sT+1)}, v8")
    A(f"s_lshl_b32 {s(sT+4)}, {s(S_WAVE)}, 12")
    A("v_lshlrev_b32 v10, 10, v13")
    A("v_lshl_add_u32 v10, v12, 2, v10")
    A(f"v_add_u32 v10, {s(sW64)}, v10")
    def dma(n):
        kind, t = jobs[n]
        for i in range(4):
            row = (32 * t if kind == "qk" else 64 * t) + 4 * i
            A(f"s_mov_b32 {s(sT)}, {row * 8192:#x}")
            A(f"s_add_u32 m0, {s(sT+4)}, {slots[n % NS] + 1024 * i}")
            if kind == "qk": A(f"buffer_load_dwordx4 v8, {s(S_A,4)}, {s(sT)} offen lds")
            else: A(f"buffer_load_dwordx4 v9, {s(S_C,4)}, {s(sT)} offen lds")
            vq.push(("c", n))
    def take(n):
        kind, t = jobs[n]
        A(f"v_add_u32 v11, {slots[n % NS]}, v10")
        for j in range(0, 16, 2):
            r = 32 * (j >> 3) + 16 * ((j >> 2) & 1) + (j & 3)
            A(f"ds_read2st64_b32 {v(96+j,2)}, v11 offset0:{r} offset1:{r+1}")
        A("s_waitcnt lgkmcnt(0)")
        for j in range(8):
            q, k = 96 + j, 104 + j
            if kind == "qk" and t >= 4:
                A(f"v_perm_b32 v1, {v(k)}, {v(q)}, {s(sPA)}")
                A(f"v_perm_b32 v2, {v(k)}, {v(q)}, {s(sPB)}")
                A(f"v_accvgpr_write_b32 {a(16*(t-4)+j)}, v1")
                A(f"v_accvgpr_write_b32 {a(16*(t-4)+8+j)}, v2")
            elif kind == "qk":
                A(f"v_perm_b32 {v(16+16*t+j)}, {v(k)}, {v(q)}, {s(sPA)}")
                A(f"v_perm_b32 {v(24+16*t+j)}, {v(k)}, {v(q)}, {s(sPB)}")
            else:
                A(f"v_perm_b32 {v(112+16*t+j)}, {v(k)}, {v(q)}, {s(sPA)}")
                A(f"v_perm_b32 {v(120+16*t+j)}, {v(k)}, {v(q)}, {s(sPB)}")
    A("v_and_b32 v3, 3, v0")
    A("v_mul_u32_u24 v3, 1152, v3")
    A("v_lshrrev_b32 v2, 2, v0")
    A("v_lshl_add_u32 v3, v2, 2, v3")
    A("v_mul_u32_u24 v4, 4608, v13")
    A("v_lshl_add_u32 v4, v12, 2, v4")
    A(f"s_mul_i32 {s(sT+2)}, {s(sH)}, 147456")
    A(f"s_lshl_b32 {s(sT)}, {s(sBlk0)}, 6")
    A(f"s_add_u32 {s(sT+2)}, {s(sT+2)}, {s(sT)}")
    A(f"s_add_u32 {s(sT+3)}, {s(sWb)}, 16384")
    def wo(o):
        b, t = divmod(o, 4)
        if WOK[o] == "R":
            f, r = WoR(WOK[:o].count("R"))
            for j in range(8):
                row = 32 * t + 16 * (j >> 2) + (j & 3)
                A(f"s_add_u32 {s(sT)}, {s(sT+2)}, {row * 1152 + 64 * b}")
                A(f"buffer_load_dword {f(r + j)}, v4, {s(S_D,4)}, {s(sT)} offen"); vq.push("w")
        else:
            li = WOK[:o].count("L")
            for hf in range(2):
                for gb in range(4):
                    row = 32 * t + 16 * hf + 4 * gb
                    A(f"s_add_u32 {s(sT)}, {s(sT+2)}, {row * 1152 + 64 * b}")
                    A(f"s_add_u32 m0, {s(sT+3)}, {li * 2048 + hf * 1024 + gb * 256}")
                    A(f"buffer_load_dword v3, {s(S_D,4)}, {s(sT)} offen lds"); vq.push("w")
    lastops = [o for o in range(16) if WOK[o] == "R" and WOK[:o].count("R") in (4, 7, 8)]
    early = [o for o in range(16) if o not in lastops]
    A("s_barrier")
    for n in range(NS - 1):
        dma(n)
    sk = A.newlabel("wo4")
    A(f"s_cmp_eq_u32 {s(sFive)}, 0")
    A(f"s_cbranch_scc1 {sk}")
    keep = list(vq.tags)
    for o in range(16, 20): wo(o)
    A.label(sk)
    vq.tags = keep
    for n in range(len(jobs)):
        vq.wait(("c", n))
        A("s_barrier")
        if n + NS - 1 < len(jobs): dma(n + NS - 1)
        if n >= 3 and n % 2 == 1 and early: wo(early.pop(0))
        if n == 4 and early: wo(early.pop(0))
        take(n)
    assert not early
    A("s_barrier")
    for i in range(16):
        A(f"ds_write_b128 v7, {v(16+4*i,4)} offset:{1024*i}")
    A("s_waitcnt lgkmcnt(0)")
    for o in lastops: wo(o)

def moff(A, d, t):
    return [f"v_and_b32 {v(d)}, 0x70, v6", f"v_bfe_u32 {v(t)}, v6, 8, 1", f"v_lshl_add_u32 {v(d)}, {v(t)}, 3, {v(d)}",
            f"v_lshrrev_b32 {v(t)}, 9, v6", f"v_lshl_add_u32 {v(d)}, {v(t)}, 2, {v(d)}"]

def chain_consts(A, exp=""):
    A("v_cmp_gt_u32 vcc, 8, v12")
    A(f"s_mov_b64 {s(sMaskLo,2)}, vcc")
    A("v_mov_b32 v1, 0xdddddddd")
    A("v_mov_b32 v2, 0x88888888")
    A("v_cndmask_b32 v1, v1, v2, vcc")
    A("v_lshlrev_b32 v2, 7, v13")
    A("v_lshl_add_u32 v2, v14, 4, v2")
    A(f"v_mul_u32_u24 v3, {ROWP}, v12")
    A("v_lshl_add_u32 v3, v13, 4, v3")
    A("v_mul_u32_u24 v4, 1152, v13")
    A("v_lshl_add_u32 v4, v12, 2, v4")
    A(f"s_add_u32 {s(sT+1)}, {s(sW64)}, {L_QKX}")
    A(f"v_add_u32 v4, {s(sT+1)}, v4")
    A("v_lshrrev_b32 v16, 3, v12")
    A("v_lshl_add_u32 v5, v16, 9, v2")
    for x in moff(A, 24, 25): A(x)
    A(f"s_mul_i32 {s(sPiece)}, {s(S_WAVE)}, 2304")
    A("v_lshrrev_b32 v18, 1, v14")
    for k in range(4):
        A(f"v_cmp_eq_u32 {s(sSel+2*k,2)}, {k}, v18")
    c1 = 128 ** -0.5 * math.log2(math.e)
    A(f"s_mov_b32 {s(sC1)}, {f2u(c1):#x}")
    A(f"s_mov_b32 {s(sC1+1)}, {f2u(c1):#x}")
    A(f"s_mov_b32 {s(sNC1)}, {f2u(-c1):#x}")
    A(f"s_lshl_b32 {s(sU)}, {s(sH)}, 1")
    A(f"s_add_u32 {s(sU)}, {s(sU)}, {s(S_WAVE)}")
    A(f"s_sub_u32 {s(sU)}, {s(sU)}, 2")
    A(f"s_add_u32 {s(sT)}, {s(sH)}, 64")
    A(f"s_cmp_ge_u32 {s(S_WAVE)}, 2")
    A(f"s_cselect_b32 {s(sU)}, {s(sU)}, {s(sT)}")
    A(f"s_cselect_b32 {s(sIsRed)}, 1, 0")
    A(f"s_cmp_lt_u32 {s(sH)}, 8")
    A(f"s_cselect_b32 {s(sT)}, 1, 0")
    A(f"s_cmp_eq_u32 {s(S_WAVE)}, 1")
    A(f"s_cselect_b32 {s(sT)}, {s(sT)}, 0")
    A(f"s_or_b32 {s(sIsRed)}, {s(sIsRed)}, {s(sT)}")
    A(f"s_mov_b32 {s(sOnes)}, 0x3f803f80")
    A(f"s_mov_b32 {s(sOnes+1)}, 0x3f803f80")
    A(f"s_mov_b32 {s(sHalf)}, 0x3f003f00")
    A(f"s_mov_b32 {s(sHalf+1)}, 0x3f003f00")
    A(f"s_mov_b32 {s(sN)}, 0")
    A(f"s_lshl_b32 {s(sU7)}, {s(sU)}, 7")
    A(f"s_lshl_b32 {s(sRB0)}, {s(sU)}, 12")
    A(f"s_add_u32 {s(sRB0)}, {s(sRB0)}, {PART:#x}")
    A(f"s_lshl_b32 {s(sT)}, {s(sH)}, 7")
    A(f"s_lshl_b32 {s(sPB0)}, {s(sBlk0)}, 14")
    A(f"s_add_u32 {s(sPB0)}, {s(sPB0)}, {s(sT)}")
    A(f"s_add_u32 {s(sPB0)}, {s(sPB0)}, {PART:#x}")
    A(f"s_mov_b32 {s(sFlN)}, 1")
    A(f"s_cmp_eq_u32 {s(sIsRed)}, 0")
    A(f"s_cselect_b32 {s(sOwn)}, {FAR:#x}, 0")
    A(f"s_add_u32 {s(sU7)}, {s(sU7)}, {s(sOwn)}")
    A(f"s_add_u32 {s(sU7)}, {s(sU7)}, {MCH:#x}")
    A(f"s_lshl_b32 {s(sKl)}, {s(S_WAVE)}, 10")
    A(f"s_add_u32 {s(sKl)}, {s(sKl)}, {L_KX}")

def chain_touch(A):
    sk = A.newlabel("nopo")
    A(f"s_cmp_eq_u32 {s(sIsRed)}, 0")
    A(f"s_cbranch_scc1 {sk}")
    A(f"s_mov_b32 {s(sT)}, {s(sRB0)}")
    for sl in range(2):
        for i in range(4):
            A(f"buffer_load_dwordx4 v[20:23], v6, {s(S_WS,4)}, {s(sT)} offen offset:{1024*i} sc1")
        A(f"s_add_u32 {s(sT)}, {s(sT)}, {PSLOT}")
    A(f"s_mov_b32 {s(sT)}, {s(sU7)}")
    for sl in range(4):
        A(f"buffer_load_dword v20, v24, {s(S_WS,4)}, {s(sT)} offen sc1")
        A(f"s_add_u32 {s(sT)}, {s(sT)}, {MENT}")
    A.label(sk)

def chain_loop(A, sc, tag, diag=False, nlayers=2, exp=""):
    ex = exp.split(",")
    def par(name, dflt):
        return int(next((x[len(name):] for x in ex if x.startswith(name) and x[len(name):].isdigit()), dflt))
    lq = Q(A, "lgkmcnt", 15); vq = Q(A, "vmcnt", 63)
    L_layer, L_top = f"L_c{tag}_layer", f"L_c{tag}_top"
    nst = [0]
    ool = []
    SEG = 0 if "samekv" in ex else 32 * 8192
    def stamp(name="std"):
        if diag and (("@" + name) in ex or name == "top"):
            A(f"{'s_memrealtime' if 'rt' in ex else 's_memtime'} {s(sStamp + 2*nst[0], 2)}")
            A("s_waitcnt lgkmcnt(0)")
            lq.reset()
            nst[0] += 1
    def zero(r, n):
        for i in range(0, n, 2):
            A(f"v_mov_b64 {v(r+i,2)}, 0")
    def pace(n):
        while n > 0:
            k = min(n, 16); A(f"s_nop {k-1}"); n -= k
    def warm(n, r):
        for _ in range(n):
            A(f"v_mov_b32 {v(r)}, {v(r)}")
            A("s_nop 2")
    def k_pre(half):
        A(f"s_add_u32 m0, {s(sKl)}, {4096*half}")
        if half: A(f"s_add_u32 {s(sT+2)}, {s(sKx)}, 4096")
    def k_dma(half):
        A(f"buffer_load_dwordx4 v6, {s(S_WS,4)}, {s(sT+2 if half else sKx)} offen sc1 lds"); vq.push("kd")
    def ring_scalars():
        return [f"s_and_b32 {s(sT)}, {s(sN)}, 3",
                f"s_xor_b32 {s(sT+1)}, {s(sT)}, 2",
                f"s_mul_i32 {s(sMpo)}, {s(sT+1)}, {MENT}",
                f"s_add_u32 {s(sMpo)}, {s(sMpo)}, {s(sU7)}"]
    A(f"s_mov_b32 {s(sL)}, 0")
    for x in ring_scalars(): A(x)
    A.label(L_layer)
    A(f"s_mov_b32 {s(sS)}, 0")
    A(f"s_mov_b32 {s(sArc)}, {FAR:#x}")
    A(f"s_mul_i32 {s(sT)}, {s(sL)}, {64*MENT}")
    A(f"s_add_u32 {s(sMsrc)}, {s(sT)}, {MARCH:#x}")
    A(f"s_add_u32 {s(sMsrc)}, {s(sMsrc)}, {s(sPiece)}")
    A(f"s_add_u32 {s(sT)}, {s(sT)}, {s(sU7)}")
    A(f"s_sub_u32 {s(sMdW)}, {s(sT)}, {MCH - MARCH:#x}")
    A(f"s_lshl_b32 {s(sT)}, {s(sL)}, 24")
    A(f"s_lshl_b32 {s(sT+1)}, {s(sH)}, 13")
    A(f"s_add_u32 {s(sT)}, {s(sT)}, {s(sT+1)}")
    A(f"s_lshl_b32 {s(sT+1)}, {s(S_WAVE)}, 10")
    A(f"s_add_u32 {s(sT)}, {s(sT)}, {s(sT+1)}")
    A(f"s_add_u32 {s(sKx)}, {s(sT)}, {KF:#x}")
    A(f"s_add_u32 {s(sT)}, {s(sT)}, {s(sT+1)}")
    A(f"s_add_u32 {s(sVx)}, {s(sT)}, {VF:#x}")
    A(f"s_lshl_b32 {s(sT)}, {s(sL)}, 20")
    A(f"s_lshl_b32 {s(sT+1)}, {s(sH)}, 13")
    A(f"s_add_u32 {s(sT)}, {s(sT)}, {s(sT+1)}")
    A(f"s_add_u32 {s(sFlag)}, {s(sT)}, {FLG + F_KV:#x}")
    mark(A, 1, sL, 60)
    lp = A.newlabel("f0l"); sk = A.newlabel("f0s")
    A(f"s_mov_b32 {s(S_CNT)}, 0")
    A.label(lp)
    spin_check(A)
    A("s_sleep 1")
    A(f"buffer_load_dword v60, off, {s(S_WS,4)}, {s(sFlag)} sc1")
    A(f"buffer_load_dword v0, off, {s(S_WS,4)}, {s(sFlag)} offset:128 sc1")
    A("s_waitcnt vmcnt(0)")
    A("v_cmp_eq_u32 vcc, 0, v60")
    A(f"s_cbranch_vccnz {lp}")
    A(f"v_readfirstlane_b32 {s(sFl)}, v0")
    A("s_barrier")
    mark(A, 2, sL, 60)
    k_pre(0); k_dma(0); k_pre(1); k_dma(1)
    A(f"s_add_u32 {s(sKx)}, {s(sKx)}, {SEG}")
    A(f"s_add_u32 {s(sFlag)}, {s(sFlag)}, 128")

    A.label(L_top)
    if diag:
        A(f"s_mov_b32 s94, {s(sStamp)}")
    stamp("top")
    A("v_lshrrev_b32 v70, 2, v6")
    for i in range(4):
        A(f"ds_read_b128 {v(36+4*i,4)}, v7 offset:{1024*i}")
    pace(par("dB", 8))
    def hb_issue():
        A(f"buffer_load_dwordx4 v[52:55], v6, {s(S_WS,4)}, {s(sMsrc)} offen sc1")
        A(f"buffer_load_dwordx4 v[56:59], v6, {s(S_WS,4)}, {s(sMsrc)} offen offset:1024 sc1")
        A(f"buffer_load_dword v68, v70, {s(S_WS,4)}, {s(sMsrc)} offen offset:2048 sc1")
    def hb_take(y):
        A(f"s_waitcnt vmcnt({y+2})")
        A("v_max3_u32 v71, v52, v53, v54")
        A("v_max_u32 v71, v71, v55")
        A("ds_write_b128 v60, v[52:55]")
        A(f"s_waitcnt vmcnt({y+1})")
        A("v_max3_u32 v71, v71, v56, v57")
        A("v_max3_u32 v71, v71, v58, v59")
        A("ds_write_b128 v60, v[56:59] offset:1024")
        A(f"s_waitcnt vmcnt({y})")
        A("v_max_u32 v71, v71, v68")
        A("ds_write_b32 v69, v68 offset:2048")
        A("v_cmp_eq_u32 vcc, -1, v71")
    lp = A.newlabel("hb"); ok = A.newlabel("hbok")
    stamp("hb")
    hb_issue()
    A(f"v_add_u32 v69, {s(sPiece)}, v70")
    A("v_and_b32 v26, 0xf0, v6")
    A("v_lshlrev_b32 v26, 3, v26")
    A("v_and_b32 v27, 0x100, v6")
    A("v_lshl_add_u32 v26, v27, 17, v26")
    A("v_mov_b32 v25, -1")
    zero(16, 8); zero(8, 8)
    A(f"s_bitcmp1_b32 {s(sN)}, 0")
    A(f"s_cselect_b32 {s(sPar)}, {PSLOT}, 0")
    A(f"s_bfe_u32 {s(sClr)}, {s(sN)}, 0x10001")
    A(f"s_add_u32 {s(sPS)}, {s(sPB0)}, {s(sPar)}")
    for i in range(1, 5):
        A(f"s_add_u32 {s(sPS+i)}, {s(sPS)}, {16384*i}")
    A(f"s_add_u32 {s(sRed)}, {s(sRB0)}, {s(sPar)}")
    A(f"s_sub_u32 {s(sFlN)}, {s(sVx)}, {VF - KF - SEG:#x}")
    A(f"s_cmp_eq_u32 {s(sFl)}, 0")
    A(f"s_cselect_b32 {s(sFlN)}, {FAR:#x}, {s(sFlN)}")
    A(f"s_mov_b32 {s(S_CNT)}, 0")
    if "dblA" in ex: A("s_waitcnt vmcnt(3)")
    A(f"v_add_u32 v60, {s(sPiece)}, v6")
    if "dbl" in ex:
        pace(par("sB", 0))
        if par("wB", 0):
            hb_issue()
            warm(par("wB", 0), 71)
            hb_take(3)
            A(f"s_cbranch_vccnz {lp}")
            def hb_slow(lp=lp, ok=ok):
                A.label(lp)
                hb_issue()
                spin_check(A)
                hb_take(3)
                A(f"s_cbranch_vccnz {lp}")
                A(f"s_branch {ok}")
            ool.append(hb_slow)
        else:
            A.label(lp)
            hb_issue()
            spin_check(A)
            hb_take(3)
            A(f"s_cbranch_vccnz {lp}")
    else:
        hb_take(0)
        A(f"s_cbranch_vccz {ok}")
        A.label(lp)
        hb_issue()
        spin_check(A)
        hb_take(0)
        A(f"s_cbranch_vccnz {lp}")
    A.label(ok)
    if diag:
        A(f"s_mov_b32 s95, {s(S_CNT)}")
    A("s_waitcnt lgkmcnt(0)")
    stamp(); stamp("hb")
    A("s_barrier")
    stamp("qk")
    lq.reset(); vq.reset()

    free = [60, 64, 52, 56, 68]
    slot = {}
    rest = list(range(4, 18))
    korder = [0] + rest[0:4] + [1] + rest[4:7] + [2] + rest[7:10] + [3] + rest[10:14]
    seq = [("m", t) for t in korder] + [("f", p) for p in range(7)]
    def rd(key, r=None):
        if r is None:
            r = free.pop(0)
        slot[key] = r
        n, t = key
        if n == "m": A(f"ds_read_b128 {v(r,4)}, v2 offset:{L_M + 512 * t}")
        elif n == "f": A(f"ds_read_b128 {v(r,4)}, v5 offset:{L_M + 1024 * t}")
        elif n == "x": A(f"ds_read_b128 {v(r,4)}, v3 offset:{L_QKX + 64 * t}")
        lq.push(key)
    def rel(key):
        free.append(slot.pop(key))
    def nxt():
        if seq and free:
            rd(seq.pop(0))
    def kxr(i):
        A(f"ds_read_b128 {v(36+4*(i%4),4)}, v6 offset:{L_KX + 1024*i}"); lq.push(("kx", i // 2))
    def Vmm(p, pr):
        lq.wait(("f", p))
        A(f"v_smfmac_f32_16x16x64_bf16 {v(8+4*pr,4)}, {v(slot[('f', p)],4)}, {VW(p, pr)}, v1")
        if pr == 1: rel(("f", p))
    nxt(); nxt()
    if "dbl" in ex: A("s_waitcnt vmcnt(0)")
    nxt(); nxt(); nxt()
    A(f"buffer_load_dwordx4 v[28:31], v6, {s(S_WS,4)}, {s(sVx)} offen sc1")
    if "v2late" not in ex: A(f"buffer_load_dwordx4 v[32:35], v6, {s(S_WS,4)}, {s(sVx)} offen offset:1024 sc1")
    refill = []
    def fill():
        if refill:
            t, i = refill.pop(0)
            if t == "kx": kxr(i)
            else:
                A(f"ds_read_b128 {v(36+4*i,4)}, v7 offset:{4096*t+1024*i}"); lq.push(("w", t))
    for pos, t in enumerate(korder):
        if pos % 2 == 1 and pos + 1 < 18: lq.wait(("m", korder[pos + 1]))
        lq.wait(("m", t))
        r = slot[("m", t)]
        if t < 4:
            lq.wait(("w", t))
            b1, b2 = v(36, 8), v(44, 8)
        else:
            b1, b2 = QK1(t), QK2(t)
        A(f"v_smfmac_f32_16x16x64_bf16 v[16:19], {v(r,4)}, {b1}, v1")
        if t < 3: refill.extend((t + 1, i) for i in range(4))
        if t == 3: refill.extend(("kx", i) for i in range(4))
        fill()
        if pos == 2:
            A(f"buffer_load_dwordx4 v[32:35], v6, {s(S_WS,4)}, {s(sVx)} offen offset:1024 sc1"); vq.push("vx")
        if pos == 3:
            A(f"buffer_store_dword v25, v24, {s(S_WS,4)}, {s(sMpo)} offen{sc}"); vq.push("o")
        if pos == 4:
            A(f"buffer_store_dword v0, v24, {s(S_WS,4)}, {s(sArc)} offen sc1"); vq.push("o")
        if pos == par("pG", 7):
            A("s_mov_b32 exec_hi, 0")
            A(f"buffer_load_dword v0, v26, {s(S_WS,4)}, {s(sFlN)} offen sc1"); vq.push("o")
            A("s_mov_b32 exec_hi, -1")
        if pos == par("pG", 7) + 1:
            A(f"buffer_load_dword v0, off, {s(S_WS,4)}, {s(sFlag)} offset:128 sc1"); vq.push("o")
        A(f"v_smfmac_f32_16x16x64_bf16 v[20:23], {v(r,4)}, {b2}, v1")
        rel(("m", t)); nxt()
        fill()
    stamp("qk")
    Vmm(0, 0); Vmm(0, 1); nxt(); Vmm(1, 0)
    for r in range(4):
        A(f"v_cvt_pk_bf16_f32 {v(16+r)}, {v(16+r)}, {v(20+r)}")
    A("ds_write2_b32 v4, v16, v17 offset0:0 offset1:72"); lq.push("w")
    A("ds_write2_b32 v4, v18, v19 offset0:144 offset1:216"); lq.push("w")
    Vmm(1, 1); nxt()
    lq.wait(("f", 3))
    Vmm(2, 0); Vmm(2, 1)
    rdy = A.newlabel("rdy"); slow = A.newlabel("fls")
    A(f"s_cmp_eq_u32 {s(sFl)}, 0")
    A(f"s_cbranch_scc1 {slow}")
    A.label(rdy)
    def slow_flag():
        lp = A.newlabel("fl")
        A.label(slow)
        A(f"s_mov_b32 {s(S_CNT)}, 0")
        A.label(lp)
        spin_check(A)
        A(f"buffer_load_dword v24, off, {s(S_WS,4)}, {s(sFlag)} sc1")
        A("s_waitcnt vmcnt(0)")
        A("v_cmp_eq_u32 vcc, 0, v24")
        A(f"s_cbranch_vccnz {lp}")
        A(f"s_branch {rdy}")
    A(f"s_mov_b32 m0, {s(sKl)}")
    Vmm(3, 0); Vmm(3, 1)
    lq.wait("w")
    stamp(); stamp("qk")
    A("s_barrier")
    stamp("s")
    rd(("x", 0)); rd(("x", 1))
    Vmm(4, 0); Vmm(4, 1); rd(("x", 2)); k_dma(0)
    Vmm(5, 0); Vmm(5, 1); rd(("x", 3)); Vmm(6, 0); Vmm(6, 1); rd(("f", 7))
    def Sx(t):
        q = slot[("x", t)]; b = 36 + 8 * (t & 1)
        lq.wait(("x", t)); lq.wait(("kx", t))
        A(f"v_mfma_f32_16x16x32_bf16 v[16:19], {v(b,4)}, {v(q,4)}, {'0' if t == 0 else 'v[16:19]'}")
        if t < 2: kxr(2 * t + 4)
        A(f"v_mfma_f32_16x16x32_bf16 v[20:23], {v(b+4,4)}, {v(q,4)}, {'0' if t == 0 else 'v[20:23]'}")
        if t < 2: kxr(2 * t + 5)
    lq.wait(("x", 1))
    Sx(0); Sx(1)
    lq.wait(("x", 3))
    for t in range(4):
        q = v(slot[("x", t)], 4)
        A(f"v_mfma_f32_16x16x32_bf16 v[24:27], {q}, {q}, {'0' if t == 0 else 'v[24:27]'}")
        if t == 0:
            rel(("x", 0)); rd(("f", 8))
    b25 = "b25" in ex
    Sx(2)
    if b25: k_pre(1)
    Sx(3)
    if b25: A("s_barrier")
    stamp("s")
    WB = [36, 44, 8, 28]
    nwo = [0]
    def rd_wo(buf):
        o = nwo[0]; nwo[0] += 1
        A(f"ds_read_b128 {v(buf,4)}, v7 offset:{16384+2048*o}"); lq.push(("wo", o))
        A(f"ds_read_b128 {v(buf+4,4)}, v7 offset:{16384+2048*o+1024}"); lq.push(("wo", o))
    f7, f8 = slot[("f", 7)], slot[("f", 8)]
    others = [r for r in (52, 56, 60, 64, 68) if r not in (f7, f8)]
    De, Do = f7, f8
    Sum, Ones, Tq = others
    tA, tB, Hf = Tq, Tq + 1, Tq + 2
    lq.wait(("f", 8))
    Vmm(7, 0)
    A("v_permlane32_swap_b32 v24, v26")
    Vmm(7, 1)
    A("v_permlane32_swap_b32 v25, v27")
    Vmm(8, 0)
    if b25 and "pv" not in ex and "zw" not in ex: k_dma(1)
    Vmm(8, 1)
    A(f"v_max3_f32 v{tA}, v16, v17, v18")
    A(f"v_max3_f32 v{tB}, v19, v26, v27")
    A(f"v_max3_f32 v{tA}, v{tA}, v20, v21")
    A(f"v_max3_f32 v{tB}, v{tB}, v22, v23")
    A(f"v_max_f32 v{tA}, v{tA}, v{tB}")
    A(f"v_mov_b32 v{tB}, v{tA}")
    rd_wo(WB[0])
    A(f"v_permlane32_swap_b32 v{tA}, v{tB}")
    A(f"v_max_f32 v{tA}, v{tA}, v{tB}")
    A(f"v_mov_b32 v{tB}, v{tA}")
    A("v_cvt_pk_bf16_f32 v8, v8, v9")
    A("v_cvt_pk_bf16_f32 v9, v10, v11")
    A(f"v_permlane16_swap_b32 v{tA}, v{tB}")
    A(f"v_max_f32 v{tA}, v{tA}, v{tB}")
    A(f"v_mul_f32 v{tA}, {s(sNC1)}, v{tA}")
    for r in [26, 16, 18, 20, 22]:
        A(f"v_pk_fma_f32 {v(r,2)}, {v(r,2)}, {s(sC1,2)}, {v(tA,2)} op_sel_hi:[1,1,0]")
    A("v_exp_f32 v26, v26")
    A("v_exp_f32 v27, v27")
    A(f"v_mov_b64 {v(Hf,2)}, {s(sHalf,2)}")
    A("v_cvt_pk_bf16_f32 v24, v26, v27")
    A("v_cvt_pk_bf16_f32 v25, v26, v27")
    A("v_cvt_pk_bf16_f32 v10, v12, v13")
    A("v_cvt_pk_bf16_f32 v11, v14, v15")
    A("v_permlane32_swap_b32 v24, v25")
    A("v_exp_f32 v16, v16")
    A("v_exp_f32 v17, v17")
    A(f"v_mfma_f32_16x16x16_bf16 {v(Sum,4)}, {v(Hf,2)}, v[24:25], 0")
    A("v_exp_f32 v18, v18")
    A("v_exp_f32 v19, v19")
    A(f"v_mfma_f32_16x16x16_bf16 {v(De,4)}, v[8:9], v[24:25], 0")
    A("v_exp_f32 v20, v20")
    A("v_exp_f32 v21, v21")
    A(f"v_mfma_f32_16x16x16_bf16 {v(Do,4)}, v[10:11], v[24:25], 0")
    A("v_exp_f32 v22, v22")
    A("v_exp_f32 v23, v23")
    A(f"v_mov_b64 {v(Ones,2)}, {s(sOnes,2)}")
    A(f"v_mov_b64 {v(Ones+2,2)}, {s(sOnes,2)}")
    A("v_cvt_pk_bf16_f32 v16, v16, v17")
    A("v_cvt_pk_bf16_f32 v17, v18, v19")
    A("v_cvt_pk_bf16_f32 v18, v20, v21")
    A("v_cvt_pk_bf16_f32 v19, v22, v23")
    stamp("s")
    vq.wait("vx")
    A(f"v_add_u32 v{tA}, {s(sW64)}, v3")
    A(f"v_mfma_f32_16x16x32_bf16 {v(Sum,4)}, {v(Ones,4)}, v[16:19], {v(Sum,4)}")
    A(f"v_mfma_f32_16x16x32_bf16 {v(De,4)}, v[28:31], v[16:19], {v(De,4)}")
    A(f"v_mfma_f32_16x16x32_bf16 {v(Do,4)}, v[32:35], v[16:19], {v(Do,4)}")
    if b25 and "pv" in ex:
        k_dma(1); rd_wo(WB[1]); rd_wo(WB[2])
    else:
        rd_wo(WB[1]); rd_wo(WB[2]); rd_wo(WB[3])
    A(f"v_rcp_f32 {v(Sum)}, {v(Sum)}")
    A(f"s_mov_b64 exec, {s(sMaskLo,2)}")
    for r in (De, De + 2, Do, Do + 2):
        A(f"v_pk_mul_f32 {v(r,2)}, {v(r,2)}, {v(Sum,2)} op_sel_hi:[1,0]")
    for r in range(4):
        A(f"v_cvt_pk_bf16_f32 {v(De+r)}, {v(De+r)}, {v(Do+r)}")
    A(f"ds_write_b128 v{tA}, {v(De,4)} offset:{L_ZX}"); lq.push("zw")
    A("s_mov_b64 exec, -1")
    if b25 and "pv" in ex: rd_wo(WB[3])
    if b25 and "zw" in ex: k_dma(1)
    zr, p9 = Tq + 1, Tq + 2
    A(f"v_subrev_u32 v{zr}, {8*ROWP}, v3")
    A(f"v_cndmask_b32 v{zr}, v{zr}, v3, {s(sMaskLo,2)}")
    zero(16, 12)
    if not b25: k_pre(1)
    A(f"s_add_u32 {s(sN)}, {s(sN)}, 1")
    rs = ring_scalars()
    Z = [De, Do, Sum, Ones]
    t3 = Tq + 3
    p9c = [f"v_and_b32 v{t3}, 0xc0, v6", f"v_lshlrev_b32 v{p9}, 6, v{t3}", f"v_and_b32 v{t3}, 0x30, v6",
           f"v_lshl_add_u32 v{p9}, v{t3}, 1, v{p9}", f"v_lshrrev_b32 v{t3}, 8, v6", f"v_lshl_add_u32 v{p9}, v{t3}, 3, v{p9}"]
    if "linst" in ex:
        p9c = [f"v_and_b32 v{t3}, 0x300, v6", f"v_lshlrev_b32 v{p9}, 4, v{t3}", f"v_and_b32 v{t3}, 0xf0, v6",
               f"v_lshrrev_b32 v{t3}, 1, v{t3}", f"v_add_u32 v{p9}, v{t3}, v{p9}", "s_nop 0"]
    def wo_enter():
        lq.wait("zw")
        A("s_barrier")
        if diag and "@wo" in ex:
            A(f"s_memtime {s(sStamp + 2*nst[0], 2)}")
            A("s_waitcnt lgkmcnt(0)")
            lq.reset()
        for t in range(4):
            A(f"ds_read_b128 {v(Z[t],4)}, v{zr} offset:{L_ZX + 64*t}"); lq.push(("z", t))
        if not b25 and "xa" not in ex: k_dma(1)
        for x in p9c[:2]: A(x)
    after = rs + [f"s_mul_i32 {s(sMr)}, {s(sT)}, {MENT}",
            f"s_add_u32 {s(sMsrc)}, {s(sMr)}, {s(sPiece)}",
            f"s_add_u32 {s(sMsrc)}, {s(sMsrc)}, {MCH:#x}",
            f"s_add_u32 {s(sMr)}, {s(sMr)}, {s(sU7)}",
            f"s_add_u32 {s(sKx)}, {s(sKx)}, {SEG}",
            f"s_add_u32 {s(sVx)}, {s(sVx)}, {SEG}"]
    late = [f"s_add_u32 {s(sMdW)}, {s(sMdW)}, {MENT}",
            f"s_add_u32 {s(sFlag)}, {s(sFlag)}, 128",
            f"s_add_u32 {s(sS)}, {s(sS)}, 1",
            f"s_mov_b32 {s(S_CNT)}, 0",
            (f"s_mov_b32 {s(sArc)}, {s(sMdW)}" if "nomarch" not in ex else "s_nop 0"),
            f"s_cmp_eq_u32 {s(sIsRed)}, 0"]
    ACC = [16, 20, 24]
    def fin_ops(b, rezero):
        acc = ACC[b % 3]
        g1 = [f"v_cvt_pk_bf16_f32 {v(acc)}, {v(acc)}, {v(acc+1)}", f"v_cvt_pk_bf16_f32 {v(acc+1)}, {v(acc+2)}, {v(acc+3)}"]
        g2 = [f"v_and_or_b32 {v(acc)}, {v(acc)}, -2, {s(sClr)}", f"buffer_store_dwordx2 {v(acc,2)}, v{p9}, {s(S_WS,4)}, {s(sPS+b)} offen{sc}"]
        g3 = [f"v_mov_b64 {v(acc,2)}, 0", f"v_mov_b64 {v(acc+2,2)}, 0"] if rezero else []
        return [g1, g2, g3]
    tail_st = []
    def wo_phase(nb):
        bufq = list(WB)
        nl = WOK[:4 * nb].count("L")
        wo_enter()
        tail_st.clear()
        pend = {4: p9c[2:4], 5: p9c[4:6]}
        for b in range(nb):
            acc = ACC[b % 3]
            for t in range(4):
                o = 4 * b + t
                if o == 1: lq.wait(("z", 3))
                lq.wait(("z", t))
                if WOK[o] == "L":
                    li = WOK[:o].count("L")
                    if li == 4: lq.wait(("wo", min(7, nl - 1)))
                    lq.wait(("wo", li))
                    buf = bufq.pop(0)
                    A(f"v_smfmac_f32_16x16x64_bf16 {v(acc,4)}, {v(Z[t],4)}, {v(buf,8)}, v1")
                    if nwo[0] < nl and "xb" not in ex:
                        rd_wo(buf)
                    bufq.append(buf)
                else:
                    f, r = WoR(WOK[:o].count("R"))
                    A(f"v_smfmac_f32_16x16x64_bf16 {v(acc,4)}, {v(Z[t],4)}, {f(r,8)}, v1")
                for x in pend.pop(o, []):
                    A(x)
            g = fin_ops(b, b + 3 < nb)
            d0 = 4 if b == nb - 1 else 3
            if "xc" in ex:
                tail_st.append(g[1][1]); g[1] = g[1][:1]; g[2] = []
            for i in range(3):
                pend.setdefault(4 * b + 3 + d0 + i, []).extend(g[i])
        first = True
        for o in sorted(pend):
            if o >= 4 * nb + 3 and first:
                first = False
                for x in late: A(x)
            for x in pend[o]:
                A(x)
    five = A.newlabel("five"); join = A.newlabel("wojoin")
    A(f"s_cmp_lg_u32 {s(sFive)}, 0")
    A(f"s_cbranch_scc1 {five}")
    save = (list(lq.tags), nwo[0])
    wo_phase(4)
    A(f"s_branch {join}")
    A.label(five)
    lq.tags = list(save[0]); nwo[0] = save[1]
    wo_phase(5)
    A.label(join)
    if diag and "@wo" in ex: nst[0] += 1
    lq.reset()
    stamp(); stamp("wo"); stamp("ha")
    if "xc" in ex:
        for x in tail_st[:4]: A(x)
        A(f"s_cmp_eq_u32 {s(sFive)}, 0")
        A(f"s_cbranch_scc1 L_xc")
        A(tail_st[4])
        A.label("L_xc")
        A(f"s_cmp_eq_u32 {s(sIsRed)}, 0")
    nred = A.newlabel("nred"); lp = A.newlabel("ha"); ok = A.newlabel("haok"); rj = A.newlabel("rj")
    A("s_barrier")
    stamp("ha")
    A("v_mov_b32 v24, 0")
    if diag: A(f"s_cmp_eq_u32 {s(sIsRed)}, 0")
    A(f"s_cselect_b32 {s(sT+3)}, 1, 0")
    for x in after: A(x)
    A(f"s_cmp_lg_u32 {s(sT+3)}, 0")
    A(f"s_cbranch_scc1 {rj}")
    def idle(rj=rj, nred=nred):
        A.label(rj)
        A("s_waitcnt vmcnt(0)")
        A(f"v_readfirstlane_b32 {s(sFl)}, v0")
        A(f"s_branch {nred}")
    ool.append(idle)
    pace(par("dA", 0))
    def ha_issue():
        for i in range(4):
            A(f"buffer_load_dwordx4 {v(52+4*i,4)}, v6, {s(S_WS,4)}, {s(sRed)} offen offset:{1024*i} sc1")
    def ha_take(y, first=False):
        for i in range(4):
            A(f"s_waitcnt vmcnt({y+3-i})")
            if i in (0, 3) and first: stamp("ha")
            b = 52 + 4 * i
            A(f"v_bitop3_b32 {v(20+i)}, {v(b)}, {v(b+2)}, {s(sClr)} bitop3:0x7e")
            A(f"v_mfma_f32_16x16x32_bf16 v[16:19], {v(b,4)}, v[68:71], {'0' if i == 0 else 'v[16:19]'}")
            if i == 2: A("v_or3_b32 v20, v20, v21, v22")
        A("v_bitop3_b32 v20, v20, v23, 1 bitop3:0xa8")
        A("v_cmp_ne_u32 vcc, 0, v20")
    ha_issue()
    A("v_and_b32 v21, 16, v6")
    A("v_mov_b32 v22, 0x3f80")
    A("v_lshlrev_b32 v21, v21, v22")
    for k in range(4):
        A(f"v_cndmask_b32 {v(68+k)}, 0, v21, {s(sSel+2*k,2)}")
    for x in moff(A, 24, 25): A(x)
    if "dblA" in ex:
        pace(par("sA", 4))
        if par("wA", 0):
            ha_issue()
            warm(par("wA", 0), 20)
            ha_take(4)
            A(f"s_cbranch_vccnz {lp}")
            def ha_slow(lp=lp, ok=ok):
                A.label(lp)
                ha_issue()
                spin_check(A)
                ha_take(4)
                A(f"s_cbranch_vccnz {lp}")
                A("s_nop 4")
                A(f"s_branch {ok}")
            ool.append(ha_slow)
        else:
            A.label(lp)
            ha_issue()
            spin_check(A)
            ha_take(4)
            A(f"s_cbranch_vccnz {lp}")
    else:
        ha_take(0, True)
        A(f"s_cbranch_vccz {ok}")
        A.label(lp)
        ha_issue()
        spin_check(A)
        ha_take(0)
        A(f"s_cbranch_vccnz {lp}")
    A.label(ok)
    A(f"v_readfirstlane_b32 {s(sFl)}, v0")
    A("v_permlane32_swap_b32 v16, v18")
    A("v_permlane32_swap_b32 v17, v19")
    A("v_pk_add_f32 v[16:17], v[16:17], v[18:19]")
    A("v_cvt_pk_bf16_f32 v0, v16, v17")
    A(f"buffer_store_dword v0, v24, {s(S_WS,4)}, {s(sMr)} offen{sc}")
    ea = A.newlabel("ea")
    A(f"s_cmp_ge_u32 {s(sS)}, {par('eA', 62)}")
    A(f"s_cbranch_scc1 {ea}")
    def early_arc(ea=ea, nred=nred):
        A.label(ea)
        A(f"buffer_store_dword v0, v24, {s(S_WS,4)}, {s(sArc)} offen sc1")
        A(f"s_mov_b32 {s(sArc)}, {FAR:#x}")
        A(f"s_branch {nred}")
    ool.append(early_arc)
    A.label(nred)
    stamp(); stamp("wo"); stamp("ha")
    if diag:
        sk = A.newlabel("nod")
        A(f"s_cmp_lg_u32 {s(sS)}, 40")
        A(f"s_cbranch_scc1 {sk}")
        A(f"s_lshl_b32 {s(sT)}, {s(sH)}, 2")
        A(f"s_add_u32 {s(sT)}, {s(sT)}, {s(S_WAVE)}")
        A(f"s_lshl_b32 {s(sT)}, {s(sT)}, 7")
        A(f"s_lshl_b32 {s(sT+1)}, {s(sL)}, 14")
        A(f"s_add_u32 {s(sT)}, {s(sT)}, {s(sT+1)}")
        A(f"s_add_u32 {s(sT)}, {s(sT)}, {DBGW + 0x1000:#x}")
        for i in range(7):
            A(f"v_mov_b32 v50, {s(sStamp+2*min(i, nst[0]-1))}")
            A(f"buffer_store_dword v50, off, {s(S_WS,4)}, {s(sT)} offset:{4*i}")
        for i, r in enumerate((94, 95, S_CNT)):
            A(f"v_mov_b32 v50, {s(r)}")
            A(f"buffer_store_dword v50, off, {s(S_WS,4)}, {s(sT)} offset:{64+4*i}")
        A.label(sk)
    A(f"s_cmp_lt_u32 {s(sS)}, 63")
    A("s_barrier")
    A(f"s_cbranch_scc1 {L_top}")
    mark(A, 3, sL, 40)
    A("s_waitcnt vmcnt(0)")
    A(f"s_add_u32 {s(sL)}, {s(sL)}, 1")
    A(f"s_cmp_lt_u32 {s(sL)}, {nlayers}")
    A(f"s_cbranch_scc1 {L_layer}")
    A(f"s_branch L_c{tag}_end")
    slow_flag()
    for f in ool: f()
    A.label(f"L_c{tag}_end")
```

```python
from asmlib import *

NAME = "interleave_layers__memory_aug_recurrent_mem_tr__spectral_gfnet__prompt"

FLG = 0x1800000
FL_STRIDE = 0x100000
F_XN, F_X, F_Y, F_KV, F_O, F_X1 = [128 * i for i in (0, 128, 256, 512, 2560, 4608)]
MENT = 9216
MARCH = 0x020000
MCH = 0x140000
PART = 0x150000
PSLOT = 80 * 4096
DBGW = 0x2F0000
XN = 0x320000
XSZ = 0x240000
X1 = 0x7A0000
X2 = 0xC20000
XF = 0xE60000
YF = 0x12E0000
X1F = 0x1A00000
KF = 0x2000000
VF = 0x4000000
OF = 0x6000000
BIG = 0x1000000
WS_SIZE = 0x10000000

KA_X, KA_MEM0, KA_WQ, KA_WK, KA_WV, KA_WO, KA_SEG, KA_BX, KA_WR, KA_WI, KA_OUT, KA_DBG, KA_WS = [8 * i for i in range(13)]

S_WS = 8
S_DBG = 12
S_A = 16
S_B = 20
S_C = 24
S_D = 28
S_WAVE = 32
S_ROLE = 33
S_T0 = 34
S_CNT = 40
SPIN_MAX = 0x100000

class Q:
    def __init__(self, asm, name, mx):
        self.a = asm; self.name = name; self.mx = mx; self.tags = []
    def push(self, tag=None):
        self.tags.append(tag)
    def wait(self, tag):
        if tag not in self.tags:
            return
        k = len(self.tags) - 1 - max(i for i, t in enumerate(self.tags) if t == tag)
        k = min(k, self.mx)
        self.a(f"s_waitcnt {self.name}({k})")
        self.tags = self.tags[len(self.tags) - k:] if k else []
    def drain(self):
        self.a(f"s_waitcnt {self.name}(0)")
        self.tags = []
    def reset(self):
        self.tags = []

def build_srd(A, d, ka_pair, size):
    A(f"s_mov_b32 {s(d)}, {s(ka_pair)}")
    A(f"s_and_b32 {s(d+1)}, {s(ka_pair+1)}, 0xffff")
    A(f"s_mov_b32 {s(d+2)}, {size:#x}")
    A(f"s_mov_b32 {s(d+3)}, 0x20000")

def load_srd(A, d, ka_off, size, tmp=S_T0):
    A(f"s_load_dwordx2 {s(tmp,2)}, s[0:1], {ka_off}")
    A("s_waitcnt lgkmcnt(0)")
    build_srd(A, d, tmp, size)

def spin_check(A, abort="L_abort"):
    A(f"s_add_u32 {s(S_CNT)}, {s(S_CNT)}, 1")
    A(f"s_cmp_gt_u32 {s(S_CNT)}, {SPIN_MAX:#x}")
    A(f"s_cbranch_scc1 {abort}")

def wait_flags(A, soff, n, tmp, sleep=1, pre=None):
    sk = A.newlabel("wfs")
    A(f"s_cmp_lg_u32 {s(S_WAVE)}, 0")
    A(f"s_cbranch_scc1 {sk}")
    A(f"s_mov_b32 {s(S_CNT)}, 0")
    if pre is not None:
        lp = A.newlabel("wfp")
        A(f"v_mov_b32 {v(tmp)}, {128*pre}")
        A.label(lp)
        spin_check(A)
        A(f"s_sleep {sleep}")
        A(f"buffer_load_dword {v(tmp+2)}, {v(tmp)}, {s(S_WS,4)}, {s(soff)} offen sc1")
        A("s_waitcnt vmcnt(0)")
        A(f"v_cmp_eq_u32 vcc, 0, {v(tmp+2)}")
        A(f"s_cbranch_vccnz {lp}")
    lp = A.newlabel("wf"); ent = A.newlabel("wfe")
    A(f"v_min_u32 {v(tmp)}, {min(n, 64)-1}, v0")
    A(f"v_lshlrev_b32 {v(tmp)}, 7, {v(tmp)}")
    if n > 64:
        A(f"v_add_u32 {v(tmp+1)}, 64, v0")
        A(f"v_min_u32 {v(tmp+1)}, {n-1}, {v(tmp+1)}")
        A(f"v_lshlrev_b32 {v(tmp+1)}, 7, {v(tmp+1)}")
    A(f"s_branch {ent}")
    A.label(lp)
    spin_check(A)
    if sleep and pre is None: A(f"s_sleep {sleep}")
    A.label(ent)
    A(f"buffer_load_dword {v(tmp+2)}, {v(tmp)}, {s(S_WS,4)}, {s(soff)} offen sc1")
    if n > 64:
        A(f"buffer_load_dword {v(tmp+3)}, {v(tmp+1)}, {s(S_WS,4)}, {s(soff)} offen sc1")
    A("s_waitcnt vmcnt(0)")
    if n > 64:
        A(f"v_min_u32 {v(tmp+2)}, {v(tmp+2)}, {v(tmp+3)}")
    A(f"v_cmpx_eq_u32 vcc, 0, {v(tmp+2)}")
    A(f"s_cbranch_execnz {lp}")
    A("s_mov_b64 exec, -1")
    A.label(sk)
    A("s_barrier")

def wave_wait_flags(A, soff, n, tmp, sleep=0):
    lp = A.newlabel("ww")
    A(f"s_mov_b32 {s(S_CNT)}, 0")
    A(f"v_min_u32 {v(tmp)}, {n-1}, v0")
    A(f"v_lshlrev_b32 {v(tmp)}, 7, {v(tmp)}")
    A.label(lp)
    spin_check(A)
    if sleep: A(f"s_sleep {sleep}")
    A(f"buffer_load_dword {v(tmp+1)}, {v(tmp)}, {s(S_WS,4)}, {s(soff)} offen sc1")
    A("s_waitcnt vmcnt(0)")
    A(f"v_cmpx_eq_u32 vcc, 0, {v(tmp+1)}")
    A(f"s_cbranch_execnz {lp}")
    A("s_mov_b64 exec, -1")

MARKS = False
def mark(A, idx, layer_sgpr=None, vt=255):
    import common
    if not common.MARKS:
        return
    A("s_memrealtime s[100:101]")
    A(f"s_lshl_b32 s98, {s(S_ROLE)}, 8")
    if layer_sgpr is not None:
        A(f"s_lshl_b32 s99, {s(layer_sgpr)}, 6")
        A("s_add_u32 s98, s98, s99")
    A(f"s_add_u32 s98, s98, {DBGW + 0x8000:#x}")
    A("s_waitcnt lgkmcnt(0)")
    A(f"v_mov_b32 {v(vt)}, s100")
    A(f"buffer_store_dword {v(vt)}, off, {s(S_WS,4)}, s98 offset:{4*idx}")
```

```python
from common import *
from chain import f2u
from pwork import wait_init, set_flag
import math

D_F64 = 0
D_F32 = 24576
D_T1 = 30720
D_T2 = 47104
D_TD = 63488
D_JOB = 81920
ND = 2
D_SC = D_JOB + 36864
D_COL = D_JOB
D_E = D_JOB
ERS = 608
D_XO = D_JOB + 20480
D_Y = D_JOB
YB = 18432
D_EO = D_JOB + 2 * YB
EOS = 1168

sRD, sL, sHS, sT, sT2, sIsF, sCol, sStep, sRow, sT3 = range(41, 51)
sJob = 51
sAct = 52
sM1 = 54
sK = 56
TB = 188
FILT = 156

def T(q, t):
    i = (q * 9 + t) * 4
    return a(i, 4) if i < 256 else v(TB + i - 256, 4)

def ln_stats(A, X, tmp):
    t0 = tmp
    A(f"v_pk_add_f32 {v(t0,2)}, {v(X,2)}, {v(X+2,2)}")
    A(f"v_pk_add_f32 {v(t0+2,2)}, {v(X+4,2)}, {v(X+6,2)}")
    for r in range(8, 48, 4):
        A(f"v_pk_add_f32 {v(t0,2)}, {v(t0,2)}, {v(X+r,2)}")
        A(f"v_pk_add_f32 {v(t0+2,2)}, {v(t0+2,2)}, {v(X+r+2,2)}")
    A(f"v_pk_add_f32 {v(t0,2)}, {v(t0,2)}, {v(t0+2,2)}")
    A(f"v_add_f32 {v(t0)}, {v(t0)}, {v(t0+1)}")
    A(f"v_cndmask_b32 {v(t0)}, 0, {v(t0)}, {s(sAct,2)}")
    def rowsum():
        for sh in (8, 4, 2, 1):
            A(f"v_add_f32_dpp {v(t0)}, {v(t0)}, {v(t0)} row_ror:{sh} row_mask:0xf bank_mask:0xf")
    rowsum()
    A(f"v_mul_f32 {v(t0)}, {f2u(-1.0/576):#x}, {v(t0)}")
    for r in range(0, 48, 2):
        A(f"v_pk_add_f32 {v(X+r,2)}, {v(X+r,2)}, {v(t0,2)} op_sel_hi:[1,0]")
    A(f"v_pk_mul_f32 {v(t0,2)}, {v(X,2)}, {v(X,2)}")
    A(f"v_pk_mul_f32 {v(t0+2,2)}, {v(X+2,2)}, {v(X+2,2)}")
    for r in range(4, 48, 4):
        A(f"v_pk_fma_f32 {v(t0,2)}, {v(X+r,2)}, {v(X+r,2)}, {v(t0,2)}")
        A(f"v_pk_fma_f32 {v(t0+2,2)}, {v(X+r+2,2)}, {v(X+r+2,2)}, {v(t0+2,2)}")
    A(f"v_pk_add_f32 {v(t0,2)}, {v(t0,2)}, {v(t0+2,2)}")
    A(f"v_add_f32 {v(t0)}, {v(t0)}, {v(t0+1)}")
    A(f"v_cndmask_b32 {v(t0)}, 0, {v(t0)}, {s(sAct,2)}")
    rowsum()
    def rnd():
        A(f"v_cvt_pk_bf16_f32 {v(t0)}, {v(t0)}, {v(t0)}")
        A(f"v_lshlrev_b32 {v(t0)}, 16, {v(t0)}")
    A(f"v_mul_f32 {v(t0)}, {f2u(1.0/576):#x}, {v(t0)}")
    rnd()
    A(f"v_add_f32 {v(t0)}, {f2u(1e-5):#x}, {v(t0)}")
    rnd()
    A(f"v_sqrt_f32 {v(t0)}, {v(t0)}")
    rnd()
    A(f"v_rcp_f32 {v(t0)}, {v(t0)}")

def unpack(A, src, dst, n):
    for i in range(n):
        A(f"v_lshlrev_b32 {v(dst+2*i)}, 16, {v(src+i)}")
        A(f"v_and_b32 {v(dst+2*i+1)}, 0xffff0000, {v(src+i)}")

def load_rows(A, R, srd, soff, sc):
    for i in range(3):
        A(f"buffer_load_dwordx4 {v(R+8*i,4)}, v2, {s(srd,4)}, {s(soff)} offen offset:{192*i}{sc}")
        A(f"buffer_load_dwordx4 {v(R+8*i+4,4)}, v3, {s(srd,4)}, {s(soff)} offen offset:{192*(2-i)}{sc}")

def store_rows(A, R, srd, soff, sc):
    for i in range(3):
        A(f"buffer_store_dwordx4 {v(R+8*i,4)}, v2, {s(srd,4)}, {s(soff)} offen offset:{192*i}{sc}")
        A(f"buffer_store_dwordx4 {v(R+8*i+4,4)}, v3, {s(srd,4)}, {s(soff)} offen offset:{192*(2-i)}{sc}")

def emit_xn(A, X, tmp, R, layer_sgpr_plus):
    for r in range(0, 48, 2):
        A(f"v_pk_mul_f32 {v(X+r,2)}, {v(X+r,2)}, {v(tmp,2)} op_sel_hi:[1,0]")
    for i in range(24):
        A(f"v_cvt_pk_bf16_f32 {v(R+i)}, {v(X+2*i)}, {v(X+2*i+1)}")
    A(f"s_lshr_b32 {s(sT)}, {s(sHS)}, 1")
    A(f"s_mul_i32 {s(sT)}, {s(sT)}, 36864")
    A(f"s_and_b32 {s(sT2)}, {s(sHS)}, 1")
    A(f"s_lshl_b32 {s(sT2)}, {s(sT2)}, 7")
    A(f"s_add_u32 {s(sT)}, {s(sT)}, {s(sT2)}")
    A(f"s_add_u32 {s(sT2)}, {s(sL)}, {layer_sgpr_plus}")
    A(f"s_mul_i32 {s(sT3)}, {s(sT2)}, {XSZ}")
    A(f"s_add_u32 {s(sT)}, {s(sT)}, {s(sT3)}")
    A(f"s_add_u32 {s(sT)}, {s(sT)}, {XN:#x}")
    for i in range(3):
        A(f"s_add_u32 {s(sT3)}, {s(sT)}, {6144*i}")
        A(f"buffer_store_dwordx4 {v(R+8*i,4)}, v4, {s(S_WS,4)}, {s(sT3)} offen sc1")
        A(f"buffer_store_dwordx4 {v(R+8*(2-i)+4,4)}, v5, {s(S_WS,4)}, {s(sT3)} offen sc1")
    A(f"s_lshl_b32 {s(sT)}, {s(sT2)}, 20")
    A(f"s_lshl_b32 {s(sT2)}, {s(sHS)}, 7")
    A(f"s_add_u32 {s(sT)}, {s(sT)}, {s(sT2)}")
    publish(A, sT, FLG + F_XN, tmp)

def publish(A, soff, imm, tmp):
    sk = A.newlabel("df")
    A(f"s_add_u32 {s(soff)}, {s(soff)}, {imm:#x}")
    A("s_waitcnt vmcnt(0)")
    A("s_barrier")
    A(f"s_cmp_lg_u32 {s(S_WAVE)}, 0")
    A(f"s_cbranch_scc1 {sk}")
    set_flag(A, soff, tmp)
    A.label(sk)

def gen_tables(A):
    A(f"s_cmp_ge_u32 {s(S_WAVE)}, 2")
    A(f"s_cselect_b32 {s(sT)}, 1, 0")
    A(f"s_cmp_lg_u32 {s(sIsF)}, 0")
    A(f"s_mov_b32 {s(sK)}, {f2u(-0.25):#x}")
    A(f"s_cselect_b32 {s(sK)}, {f2u(0.25):#x}, {s(sK)}")
    A(f"s_cselect_b32 {s(sK+1)}, 0, {f2u(1.0/1152):#x}")
    A(f"s_cselect_b32 {s(sK+2)}, {f2u(1.0/1152):#x}, 0")
    A(f"s_cmp_lg_u32 {s(sT)}, 0")
    A(f"s_cselect_b32 {s(sK)}, {s(sK)}, 0")
    A(f"s_cselect_b32 {s(sK+3)}, {f2u(0.5):#x}, 0")
    A(f"s_and_b32 {s(sT2)}, {s(S_WAVE)}, 1")
    A(f"s_mul_i32 {s(sT2)}, {s(sT2)}, 144")
    A(f"v_add_u32 v16, {s(sT2)}, v12")
    A("v_lshlrev_b32 v17, 3, v13")
    A("v_cvt_f32_u32 v17, v17")
    A("v_cmp_eq_u32 vcc, 0, v16")
    A(f"s_cmp_lg_u32 {s(sIsF)}, 0")
    A(f"s_cselect_b64 {s(sM1,2)}, vcc, 0")
    A("v_mov_b32 v18, 288")
    A(f"v_cndmask_b32 v18, v16, v18, {s(sM1,2)}")
    A(f"s_cmp_lg_u32 {s(sT)}, 0")
    A(f"s_cselect_b64 {s(sM1,2)}, 0, {s(sM1,2)}")
    A("v_mov_b32 v19, 1.0")
    A(f"v_cndmask_b32 v19, v19, 0, {s(sM1,2)}")
    A("v_cmp_eq_u32 vcc, 0, v13")
    A(f"s_cmp_lg_u32 {s(sIsF)}, 0")
    A(f"s_cselect_b64 {s(sM1,2)}, 0, vcc")
    A("v_lshlrev_b32 v20, 31, v12")
    A(f"v_xor_b32 v20, {s(sK+3)}, v20")
    for q in range(9):
        if q == 0:
            A("v_cvt_f32_u32 v21, v18")
        else:
            A(f"v_add_u32 v21, {16*q}, v16")
            A("v_cvt_f32_u32 v21, v21")
        A(f"v_mov_b32 v22, {s(sK+1)}")
        A(f"v_fmac_f32 v22, {f2u(2.0/1152):#x}, v21")
        A(f"v_mov_b32 v23, {s(sK)}")
        A(f"v_fmac_f32 v23, {s(sK+2)}, v21")
        A("v_fmac_f32 v23, v17, v22")
        for t in range(9):
            for i in range(8):
                b = 32 * t + i
                if b == 0:
                    A(f"v_cos_f32 {v(24+i)}, v23")
                else:
                    A(f"v_fmamk_f32 {v(24+i)}, v22, {f2u(float(b)):#x}, v23")
                    A(f"v_cos_f32 {v(24+i)}, {v(24+i)}")
            if q == 0:
                for i in range(0, 8):
                    A(f"v_mul_f32 {v(24+i)}, v19, {v(24+i)}")
            if t == 0:
                A(f"v_cndmask_b32 v24, v24, v20, {s(sM1,2)}")
            idx = (q * 9 + t) * 4
            for d in range(4):
                if idx < 256:
                    A(f"v_cvt_pk_bf16_f32 {v(24+2*d)}, {v(24+2*d)}, {v(25+2*d)}")
                    A(f"v_accvgpr_write_b32 {a(idx+d)}, {v(24+2*d)}")
                else:
                    A(f"v_cvt_pk_bf16_f32 {v(TB+idx-256+d)}, {v(24+2*d)}, {v(25+2*d)}")
    A("v_and_b32 v16, 31, v0")
    A("v_cvt_f32_u32 v16, v16")
    A("v_lshrrev_b32 v17, 5, v0")
    A("v_lshlrev_b32 v17, 2, v17")
    A("v_cvt_f32_u32 v17, v17")
    A(f"v_cvt_f32_u32 v18, {s(S_WAVE)}")
    A(f"s_lshl_b32 {s(sT)}, {s(S_WAVE)}, 10")
    A(f"v_add_u32 v19, {s(sT)}, v6")
    A("v_mov_b32 v20, v17")
    A(f"v_fmac_f32 v20, {f2u(16.0):#x}, v18")
    def trio(u, base, off, stride):
        for i in range(8):
            A(f"v_add_f32 {v(24+i)}, {f2u(float(8*(i>>2)+(i&3))):#x}, {v(base)}")
            A(f"v_mul_f32 {v(24+i)}, {v(24+i)}, {v(u)}")
            A(f"v_sin_f32 {v(32+i)}, {v(24+i)}")
            A(f"v_cos_f32 {v(24+i)}, {v(24+i)}")
        for d in range(4):
            A(f"v_cvt_pk_bf16_f32 {v(40+d)}, {v(24+2*d)}, {v(25+2*d)}")
            A(f"v_cvt_pk_bf16_f32 {v(44+d)}, {v(32+2*d)}, {v(33+2*d)}")
            A(f"v_xor_b32 {v(48+d)}, 0x80008000, {v(44+d)}")
        for k in range(3):
            A(f"ds_write_b128 v19, {v(40+4*k,4)} offset:{off + stride*k}")
        A("s_waitcnt lgkmcnt(0)")
    for tl in range(2):
        A(f"v_add_f32 v21, {f2u(32.0*tl):#x}, v16")
        A(f"v_mul_f32 v21, {f2u(1.0/64):#x}, v21")
        trio(21, 20, D_F64 + 4096 * tl, 8192)
    sk = A.newlabel("nf32")
    A(f"s_cmp_ge_u32 {s(S_WAVE)}, 2")
    A(f"s_cbranch_scc1 {sk}")
    A(f"v_mul_f32 v21, {f2u(1.0/32):#x}, v16")
    trio(21, 20, D_F32, 2048)
    A.label(sk)
    A(f"s_lshl_b32 {s(sT)}, {s(S_WAVE)}, 11")
    A(f"v_add_u32 v19, {s(sT)}, v6")
    A("v_mov_b32 v20, v17")
    A(f"v_fmac_f32 v20, {f2u(8.0):#x}, v18")
    scale = 2.0 / 576 / 2048
    for tbl in range(2):
        for tl in range(2):
            if tbl == 0:
                A(f"v_add_f32 v21, {f2u(32.0*tl):#x}, v16")
                radd = 0
            else:
                A("v_mov_b32 v21, v16")
                radd = 32 * tl
            A(f"v_mul_f32 v21, {f2u(1.0/2048):#x}, v21")
            for r in range(4):
                A(f"v_add_f32 {v(24+r)}, {f2u(float(r+radd)):#x}, v20")
                A(f"v_mul_f32 {v(24+r)}, {v(24+r)}, v21")
                A(f"v_sin_f32 {v(28+r)}, {v(24+r)}")
                A(f"v_cos_f32 {v(24+r)}, {v(24+r)}")
            if tbl == 1:
                for r in range(8):
                    A(f"v_mul_f32 {v(24+r)}, {f2u(scale):#x}, {v(24+r)}")
            off = (D_T1, D_T2)[tbl] + 8192 * tl
            A(f"ds_write_b128 v19, v[24:27] offset:{off}")
            A(f"ds_write_b128 v19, v[28:31] offset:{off + 1024}")
            A("s_waitcnt lgkmcnt(0)")
    A("v_lshrrev_b32 v16, 1, v12")
    A(f"s_lshl_b32 {s(sT)}, {s(sRD)}, 2")
    A(f"v_add_u32 v16, {s(sT)}, v16")
    A("v_and_b32 v17, 1, v12")
    A("v_or_b32 v19, v16, v17")
    A("v_cmp_eq_u32 vcc, 0, v16")
    A("v_mov_b32 v20, 288")
    A("v_cndmask_b32 v16, v16, v20, vcc")
    A("v_cmp_gt_u32 vcc, 8, v12")
    A("v_cndmask_b32 v16, 0, v16, vcc")
    A("v_cvt_f32_u32 v16, v16")
    A("v_cvt_f32_u32 v17, v17")
    A("v_mov_b32 v21, 1.0")
    A("v_cmp_ne_u32 vcc, 0, v19")
    A("v_cndmask_b32 v21, 0, v21, vcc")
    A("v_cmp_ge_u32 vcc, 8, v12")
    A("v_cndmask_b32 v21, 0, v21, vcc")
    A(f"v_mul_f32 v22, {f2u(2.0/1152):#x}, v16")
    A(f"v_mul_f32 v23, {f2u(1.0/1152):#x}, v16")
    A(f"v_fmac_f32 v23, {f2u(0.25):#x}, v17")
    A("v_lshlrev_b32 v17, 3, v13")
    A(f"s_lshl_b32 {s(sT)}, {s(S_WAVE)}, 5")
    A(f"v_add_u32 v17, {s(sT)}, v17")
    A("v_cvt_f32_u32 v17, v17")
    A("v_fmac_f32 v23, v17, v22")
    A(f"s_lshl_b32 {s(sT)}, {s(S_WAVE)}, 10")
    A(f"s_add_u32 {s(sT)}, {s(sT)}, {D_TD}")
    A(f"v_add_u32 v19, {s(sT)}, v6")
    sk = A.newlabel("td5")
    for j in range(5):
        if j == 4:
            A(f"s_cmp_ge_u32 {s(S_WAVE)}, 2")
            A(f"s_cbranch_scc1 {sk}")
        for i in range(8):
            A(f"v_fmamk_f32 {v(24+i)}, v22, {f2u(float(128*j + i)):#x}, v23")
            A(f"v_fract_f32 {v(24+i)}, {v(24+i)}")
            A(f"v_cos_f32 {v(24+i)}, {v(24+i)}")
        for i in range(8):
            A(f"v_mul_f32 {v(24+i)}, v21, {v(24+i)}")
        for d in range(4):
            A(f"v_cvt_pk_bf16_f32 {v(32+d)}, {v(24+2*d)}, {v(25+2*d)}")
        A(f"ds_write_b128 v19, v[32:35] offset:{4096*j}")
        A("s_waitcnt lgkmcnt(0)")
    A.label(sk)
    A(f"s_cmp_eq_u32 {s(sCol)}, 0")
    A(f"s_cselect_b32 {s(sT)}, 288, {s(sCol)}")
    A(f"s_lshl_b32 {s(sT)}, {s(sT)}, 1")
    A("v_and_b32 v16, 31, v0")
    A("v_lshrrev_b32 v17, 5, v0")
    A("v_lshl_add_u32 v16, v17, 8, v16")
    A("v_mul_u32_u24 v16, 578, v16")
    A(f"v_add_u32 v16, {s(sT)}, v16")
    for tl in range(2):
        for r in range(16):
            n = tl * 16 + r
            A(f"s_mov_b32 {s(sT)}, {(32*tl + 64*(8*(r>>2) + (r&3))) * 578:#x}")
            A(f"buffer_load_ushort {v(FILT+n)}, v16, {s(S_C,4)}, {s(sT)} offen")
            A(f"buffer_load_ushort {v(24+r)}, v16, {s(S_D,4)}, {s(sT)} offen")
        A("s_waitcnt vmcnt(0)")
        for r in range(16):
            A(f"v_lshl_or_b32 {v(FILT+tl*16+r)}, {v(24+r)}, 16, {v(FILT+tl*16+r)}")

def fft_job(A):
    lq = Q(A, "lgkmcnt", 15)
    ACC = 16
    OP = 80
    Z0 = 112
    TBUF = 128
    TW = 144
    TM = 152
    def acc(tl, ri): return ACC + (tl * 2 + ri) * 16
    def op(ri, ks): return OP + (ri * 4 + ks) * 4
    A(f"s_lshl_b32 {s(sT)}, {s(sL)}, 20")
    A(f"s_add_u32 {s(sT)}, {s(sT)}, {FLG + F_X:#x}")
    wait_flags(A, sT, 96, 16, sleep=FSLEEP[0], pre=95)
    A(f"s_mul_i32 {s(sT)}, {s(sL)}, {XSZ}")
    A(f"s_lshl_b32 {s(sT2)}, {s(sCol)}, 13")
    A(f"s_add_u32 {s(sRow)}, {s(sT)}, {s(sT2)}")
    A(f"s_add_u32 {s(sT)}, {s(sRow)}, {XF:#x}")
    A(f"s_mul_i32 {s(sT2)}, {s(S_WAVE)}, 9216")
    A(f"s_add_u32 {s(sT2)}, {s(sT2)}, {D_COL}")
    for i in range(6):
        if i % 4 == 0:
            A(f"s_add_u32 m0, {s(sT2)}, {1024*i}")
            if i: A(f"s_add_u32 {s(sT)}, {s(sT)}, 4096")
        A(f"buffer_load_dwordx4 v6, {s(S_WS,4)}, {s(sT)} offen offset:{1024*(i%4)} sc1 lds")
    A("v_lshrrev_b32 v14, 5, v0")
    A("v_lshlrev_b32 v14, 9, v14")
    A("v_bfe_u32 v15, v0, 2, 2")
    A("v_lshl_add_u32 v14, v15, 7, v14")
    A("v_bfe_u32 v15, v0, 4, 1")
    A("v_lshl_add_u32 v14, v15, 6, v14")
    A("v_and_b32 v15, 3, v0")
    A("v_lshl_add_u32 v14, v15, 3, v14")
    A(f"v_add_u32 v14, {s(sT2)}, v14")
    def direct():
        XR, NX, TR, DD, GS = 80, 15, 140, 148, 152
        A(f"s_lshl_b32 {s(sT)}, {s(sL)}, 20")
        A(f"s_add_u32 {s(sT)}, {s(sT)}, {FLG + F_X + 116*128:#x}")
        wait_flags(A, sT, 1, 152, sleep=FSLEEP[0])
        A(f"v_add_u32 v15, {D_TD}, v6")
        for t_ in range(2):
            A(f"ds_read_b128 {v(TR+4*t_,4)}, v15 offset:{1024*t_}")
        A(f"s_lshl_b32 {s(sT)}, {s(sL)}, 2")
        A(f"s_add_u32 {s(sT)}, {s(sT)}, {s(S_WAVE)}")
        A(f"s_mul_i32 {s(sK+4)}, {s(sT)}, {18*1024}")
        A(f"s_add_u32 {s(sK+4)}, {s(sK+4)}, {X1F:#x}")
        A(f"s_lshl_b32 {s(sT)}, {s(sL)}, 20")
        A(f"s_mul_i32 {s(sT3)}, {s(S_WAVE)}, {18*128}")
        A(f"s_add_u32 {s(sT)}, {s(sT)}, {s(sT3)}")
        A(f"s_add_u32 {s(sT)}, {s(sT)}, {FLG + F_X1 + 124*18*128:#x}")
        wave_wait_flags(A, sT, 18, 152, sleep=FSLEEP[1])
        mark(A, 5, sL, 152)
        vq = Q(A, "vmcnt", 63)
        def ld(t_):
            if t_ and t_ % 4 == 0: A(f"s_add_u32 {s(sK+4)}, {s(sK+4)}, 4096")
            A(f"buffer_load_dwordx4 {v(XR+4*(t_%NX),4)}, v6, {s(S_WS,4)}, {s(sK+4)} offen offset:{1024*(t_%4)} sc1"); vq.push(t_)
        for t_ in range(NX): ld(t_)
        for t_ in range(18):
            vq.wait(t_)
            A(f"s_waitcnt lgkmcnt({1 if t_ < 17 else 0})")
            x = v(XR + 4 * (t_ % NX), 4); tb = TR + 4 * (t_ & 1)
            A(f"v_mfma_f32_16x16x32_bf16 {v(DD,4)}, {x}, {v(tb,4)}, {'0' if t_ == 0 else v(DD,4)}")
            if t_ + 2 < 18: A(f"ds_read_b128 {v(tb,4)}, v15 offset:{1024*(t_+2)}")
            A(f"v_mfma_f32_16x16x32_bf16 {v(GS,4)}, {x}, {x}, {'0' if t_ == 0 else v(GS,4)}")
            if t_ + NX < 18: ld(t_ + NX)
        mark(A, 36, sL, 120)
        A(f"s_lshl_b32 {s(sT)}, {s(S_WAVE)}, 10")
        A(f"s_add_u32 {s(sT)}, {s(sT)}, {D_SC}")
        A(f"v_add_u32 v15, {s(sT)}, v6")
        A("v_lshlrev_b32 v121, 10, v13")
        A("v_lshrrev_b32 v122, 2, v12")
        A("v_lshl_add_u32 v121, v122, 8, v121")
        A("v_and_b32 v122, 3, v12")
        A("v_lshl_add_u32 v121, v122, 2, v121")
        A(f"v_add_u32 v121, {D_SC}, v121")
        A("v_lshl_add_u32 v123, v12, 4, v121")
        A(f"ds_write_b128 v15, {v(DD,4)}")
        A(f"ds_write_b128 v15, {v(GS,4)} offset:4096")
        A(f"s_lshl_b32 {s(sT)}, {s(S_WAVE)}, 5")
        A(f"v_add_u32 v122, {s(sT)}, v121")
        A("v_lshlrev_b32 v125, 6, v13")
        A("v_lshl_add_u32 v125, v12, 1, v125")
        A(f"v_add_u32 v125, {s(sT2)}, v125")
        nb = A.newlabel("dnb")
        A(f"s_cmp_lg_u32 {s(S_WAVE)}, 0")
        A(f"s_cbranch_scc1 {nb}")
        A(f"s_lshl_b32 {s(sT)}, {s(sL)}, 20")
        A(f"s_add_u32 {s(sT)}, {s(sT)}, {FLG + F_X + 96*128:#x}")
        wave_wait_flags(A, sT, 28, 126, sleep=0)
        mark(A, 38, sL, 126)
        for hf in range(2):
            if hf: A("s_mov_b32 exec_hi, 0xffff")
            for c4 in range(4):
                A(f"s_add_u32 {s(sT)}, {s(sRow)}, {XF + 6144 + 8192*c4:#x}")
                A(f"s_mov_b32 m0, {D_COL + 9216*c4 + 6144}")
                A(f"buffer_load_dwordx4 v6, {s(S_WS,4)}, {s(sT)} offen offset:{1024*hf} sc1 lds")
        A("s_mov_b32 exec_hi, -1")
        A("s_waitcnt vmcnt(0)")
        A.label(nb)
        A("s_waitcnt lgkmcnt(0)")
        A("s_barrier")
        mark(A, 37, sL, 126)
        A("ds_read_b32 v126, v121 offset:128")
        A("ds_read_b32 v128, v123 offset:4096")
        A("ds_read2_b32 v[130:131], v122 offset0:0 offset1:4")
        A("s_waitcnt lgkmcnt(1)")
        A(f"v_mul_f32 v126, {f2u(1.0/576):#x}, v126")
        A(f"v_mul_f32 v128, {f2u(1.0/576):#x}, v128")
        A("v_fma_f32 v128, -v126, v126, v128")
        A("v_max_f32 v128, 0, v128")
        for stp in ("", f"v_add_f32 v128, {f2u(1e-5):#x}, v128", "v_sqrt_f32 v128, v128"):
            if stp: A(stp)
            A("v_cvt_pk_bf16_f32 v128, v128, v128")
            A("v_lshlrev_b32 v128, 16, v128")
        A("v_rcp_f32 v128, v128")
        A("s_waitcnt lgkmcnt(0)")
        A("v_mul_f32 v130, v130, v128")
        A("v_mul_f32 v131, v131, v128")
        A("v_cvt_pk_bf16_f32 v130, v130, v131")
        A(f"ds_write_b16 v125, v130 offset:{62*128}")
        A(f"ds_write_b16_d16_hi v125, v130 offset:{62*128 + 32}")
    ring = {"free": [TBUF, TBUF + 4, TBUF + 8, TBUF + 12], "q": [], "at": {}}
    def tq(step, kss=range(4)):
        ring["q"] += [(step, tl, ks, k) for tl in range(2) for ks in kss for k in range(3)]
    def tnext():
        while ring["q"] and ring["free"]:
            key = ring["q"].pop(0); r = ring["free"].pop(0); ring["at"][key] = r
            A(f"ds_read_b128 {v(r,4)}, v6 offset:{D_F64 + 4096*key[1] + 1024*key[2] + 8192*key[3]}"); lq.push(key)
    def trel(key):
        ring["free"].append(ring["at"].pop(key)); tnext()
    def trx(kss):
        for ks in kss:
            for ri in range(2):
                for j in range(2):
                    A(f"ds_read_b64_tr_b16 {v(op(ri,ks)+2*j,2)}, v14 offset:{(16*ks+8*j)*128 + 32*ri}"); lq.push(("x", ks))
    def Z(ri, ks): return Z0 + (ri * 2 + ks) * 4 if ks < 2 else op(ri, ks)
    F32R = [[TBUF, TBUF + 4, TBUF + 8], [TBUF + 12, op(0, 0), op(0, 1)]]
    TW2 = op(1, 0)
    def big(step, tl, kss, src):
        conj = step == 4
        out = []
        for ks in kss:
            kr, ki = (2, 1) if conj else (1, 2)
            for (ri, dat, k, fst, last) in sorted([(0, 0, 0, ks == 0, False), (1, 1, 0, ks == 0, True), (0, 1, kr, False, True), (1, 0, ki, False, True)], key=lambda x: x[2]):
                def it(ri=ri, dat=dat, k=k, fst=fst, last=last, ks=ks):
                    key = (step, tl, ks, k)
                    if step == 1: lq.wait(("x", ks))
                    lq.wait(key)
                    d = v(acc(tl, ri), 16)
                    A(f"v_mfma_f32_32x32x16_bf16 {d}, {v(src(dat, ks),4)}, {v(ring['at'][key],4)}, {'0' if fst else d}")
                    if last: trel(key)
                out.append(it)
        return out
    def small(tl, conj):
        out = []
        for k2 in range(2):
            C, S, N = F32R[k2]
            sr, si = (N, S) if conj else (S, N)
            for (ri, dat, tab, fst) in ((0, 0, C, k2 == 0), (1, 1, C, k2 == 0), (0, 1, sr, False), (1, 0, si, False)):
                def it(ri=ri, dat=dat, tab=tab, fst=fst, k2=k2):
                    lq.wait("f32")
                    d = v(acc(tl, ri), 16); x = v(Z(dat, 2 * tl + k2), 4)
                    o1, o2 = (x, v(tab, 4)) if conj else (v(tab, 4), x)
                    A(f"v_mfma_f32_32x32x16_bf16 {d}, {o1}, {o2}, {'0' if fst else d}")
                out.append(it)
        return out
    def cmul(kind, tl, dbl=True):
        out = []
        bufs = [TW, TW2] if dbl else [TW, TW]
        def rdtw(rq):
            b = bufs[rq & 1]
            off = (D_T1 if kind == 1 else D_T2) + 8192 * tl + 2048 * rq
            A(f"ds_read_b128 {v(b,4)}, v6 offset:{off}"); lq.push(("w", kind, tl, rq))
            A(f"ds_read_b128 {v(b+4,4)}, v6 offset:{off+1024}"); lq.push(("w", kind, tl, rq))
        if kind != 2:
            rdtw(0)
            if dbl: rdtw(1)
        n1, n2 = ("", " neg_lo:[1,0,0] neg_hi:[1,0,0]") if kind == 1 else (" neg_lo:[1,0,0] neg_hi:[1,0,0]", "")
        for rq in range(4):
            b = bufs[rq & 1]
            if kind == 2:
                for r in range(4):
                    f = FILT + tl * 16 + rq * 4 + r
                    out.append(lambda b=b, r=r, f=f: A(f"v_lshlrev_b32 {v(b+r)}, 16, {v(f)}"))
                    out.append(lambda b=b, r=r, f=f: A(f"v_and_b32 {v(b+4+r)}, 0xffff0000, {v(f)}"))
            for p in range(2):
                zr, zi = acc(tl, 0) + 4 * rq + 2 * p, acc(tl, 1) + 4 * rq + 2 * p
                c, sn = v(b + 2 * p, 2), v(b + 4 + 2 * p, 2)
                ks = 2 * tl + (rq >> 1); d = 2 * (rq & 1) + p
                cb, sb = b + 2 * p, b + 4 + 2 * p
                m1, m2 = ("", "-") if kind == 1 else ("-", "")
                def first(zr=zr, cb=cb, rq=rq):
                    lq.wait(("w", kind, tl, rq))
                    A(f"v_mul_f32 {v(TM)}, {v(zr)}, {v(cb)}")
                out.append(first)
                def fm(d, x, y, neg):
                    return f"v_fma_f32 {v(d)}, -{v(x)}, {v(y)}, {v(d)}" if neg else f"v_fmac_f32 {v(d)}, {v(x)}, {v(y)}"
                for x in (f"v_mul_f32 {v(TM+1)}, {v(zr+1)}, {v(cb+1)}",
                          f"v_mul_f32 {v(TM+2)}, {v(zi)}, {v(cb)}",
                          f"v_mul_f32 {v(TM+3)}, {v(zi+1)}, {v(cb+1)}",
                          fm(TM, zi, sb, m1), fm(TM + 1, zi + 1, sb + 1, m1),
                          fm(TM + 2, zr, sb, m2), fm(TM + 3, zr + 1, sb + 1, m2)):
                    out.append(lambda x=x: A(x))
                if p == 1 and kind != 2:
                    nx = rq + (2 if dbl else 1)
                    if nx < 4: out.append(lambda nx=nx: rdtw(nx))
                out.append(lambda ks=ks, d=d: A(f"v_cvt_pk_bf16_f32 {v(Z(0,ks)+d)}, {v(TM)}, {v(TM+1)}"))
                out.append(lambda ks=ks, d=d: A(f"v_cvt_pk_bf16_f32 {v(Z(1,ks)+d)}, {v(TM+2)}, {v(TM+3)}"))
        return out
    def outp(tl):
        out = []
        for ri in range(2):
            for rq in range(4):
                z = acc(tl, ri) + 4 * rq
                out.append(lambda z=z: A(f"v_cvt_pk_bf16_f32 {v(z)}, {v(z)}, {v(z+1)}"))
                out.append(lambda z=z: A(f"v_cvt_pk_bf16_f32 {v(z+1)}, {v(z+2)}, {v(z+3)}"))
                def wr(z=z, ri=ri, rq=rq):
                    A(f"ds_write_b64 v14, {v(z,2)} offset:{32*144*tl + (rq>>1)*64 + ri*32 + (rq&1)*16}"); lq.push("o")
                out.append(wr)
        return out
    def merge(ms, vs, lead=2):
        ms = list(ms); vs = list(vs)
        n = 0
        while ms:
            ms.pop(0)(); n += 1
            if n >= lead:
                k = -(-len(vs) // (len(ms) + 1))
                for _ in range(k): vs.pop(0)()
        for x in vs: x()
    def rdf32():
        for k2 in range(2):
            for k in range(3):
                A(f"ds_read_b128 {v(F32R[k2][k],4)}, v6 offset:{D_F32 + 1024*k2 + 2048*k}"); lq.push("f32")
    tq(1, range(3)); tnext()
    A("s_waitcnt vmcnt(0)")
    trx(range(3))
    merge(big(1, 0, range(3), op), [])
    merge(big(1, 1, range(3), op), [])
    direct()
    lq.reset(); lq.push("img"); lq.push("img")
    trx([3])
    tq(1, [3]); tnext()
    mark(A, 13, sL, 155)
    A("v_and_b32 v14, 31, v0")
    A("v_mul_u32_u24 v14, 144, v14")
    A("v_lshrrev_b32 v15, 5, v0")
    A("v_lshl_add_u32 v14, v15, 3, v14")
    A(f"v_add_u32 v14, {s(sT2)}, v14")
    merge(big(1, 0, [3], op), [])
    merge(big(1, 1, [3], op), cmul(1, 0), lead=4)
    rdf32()
    merge(small(0, False), cmul(1, 1))
    merge(small(1, False), cmul(2, 0))
    merge(small(0, True), cmul(2, 1))
    merge(small(1, True), cmul(3, 0))
    tq(4); tnext()
    merge(big(4, 0, (0, 1), Z), cmul(3, 1))
    merge(big(4, 0, (2, 3), Z), [])
    merge(big(4, 1, range(4), Z), outp(0))
    mark(A, 14, sL, 155)
    merge([], outp(1))
    A("v_lshrrev_b32 v14, 3, v0")
    A("v_mul_u32_u24 v14, 144, v14")
    A("v_and_b32 v15, 7, v0")
    A("v_lshl_add_u32 v14, v15, 4, v14")
    A(f"v_add_u32 v14, {s(sT2)}, v14")
    A("s_waitcnt lgkmcnt(0)")
    for i in range(8):
        A(f"ds_read_b128 {v(OP+4*i,4)}, v14 offset:{8*144*i}")
    A(f"s_add_u32 {s(sT)}, {s(sRow)}, {YF:#x}")
    for i in range(8):
        A(f"s_waitcnt lgkmcnt({7-i})")
        if i == 4: A(f"s_add_u32 {s(sT)}, {s(sT)}, 4096")
        A(f"buffer_store_dwordx4 {v(OP+4*i,4)}, v6, {s(S_WS,4)}, {s(sT)} offen offset:{1024*(i%4)} sc1")
    A(f"s_lshl_b32 {s(sT)}, {s(sL)}, 20")
    A(f"s_lshl_b32 {s(sT2)}, {s(sRD)}, 7")
    A(f"s_add_u32 {s(sT)}, {s(sT)}, {s(sT2)}")
    publish(A, sT, FLG + F_Y, 14)

def fwd_job(A):
    R, X, tmp = 16, 40, 88
    A(f"s_lshl_b32 {s(sT)}, {s(sL)}, 20")
    A(f"s_mul_i32 {s(sT2)}, {s(sHS)}, {18*128}")
    A(f"s_add_u32 {s(sT)}, {s(sT)}, {s(sT2)}")
    A(f"s_add_u32 {s(sT)}, {s(sT)}, {FLG + F_X1:#x}")
    wait_flags(A, sT, 18, 16, sleep=FSLEEP[1])
    mark(A, 3, sL, 16)
    A(f"s_mul_i32 {s(sT)}, {s(sL)}, {XSZ}")
    A(f"s_mul_i32 {s(sT2)}, {s(sHS)}, {16*1152}")
    A(f"s_add_u32 {s(sT)}, {s(sT)}, {s(sT2)}")
    A(f"s_add_u32 {s(sT)}, {s(sT)}, {X1:#x}")
    load_rows(A, R, S_WS, sT, " sc1")
    A("s_waitcnt vmcnt(0)")
    mark(A, 10, sL, 150)
    unpack(A, R, X, 24)
    ln_stats(A, X, tmp)
    E, O = 92, 116
    for i in range(3):
        for m in range(0, 8, 2):
            xa, xb = v(X + 16 * i + m, 2), v(X + 16 * i + 8 + 6 - m, 2)
            A(f"v_pk_add_f32 {v(E+8*i+m,2)}, {xa}, {xb} op_sel:[0,1] op_sel_hi:[1,0]")
            A(f"v_pk_add_f32 {v(O+8*i+m,2)}, {xa}, {xb} op_sel:[0,1] op_sel_hi:[1,0] neg_lo:[0,1] neg_hi:[0,1]")
    for r in range(0, 48, 2):
        A(f"v_pk_mul_f32 {v(E+r,2)}, {v(E+r,2)}, {v(tmp,2)} op_sel_hi:[1,0]")
    for r in range(24):
        A(f"v_cvt_pk_bf16_f32 {v(R+r)}, {v(E+2*r)}, {v(E+2*r+1)}")
    A(f"s_mov_b64 exec, {s(sAct,2)}")
    for i in range(3):
        A(f"ds_write_b128 v7, {v(R+4*i,4)} offset:{192*i}")
        A(f"ds_write_b128 v7, {v(R+12+4*i,4)} offset:{16*ERS + 192*i}")
    A("s_mov_b64 exec, -1")
    A("s_waitcnt lgkmcnt(0)")
    A("s_barrier")
    mark(A, 11, sL, 150)
    F, ACC = 16, 52
    for t in range(9):
        A(f"ds_read_b128 {v(F+4*t,4)}, v8 offset:{64*t}")
    for t in range(9):
        A(f"s_waitcnt lgkmcnt({8-t})")
        for q in range(9):
            d = v(ACC + 4 * q, 4)
            A(f"v_mfma_f32_16x16x32_bf16 {d}, {v(F+4*t,4)}, {T(q,t)}, {'0' if t == 0 else d}")
    A(f"s_mul_i32 {s(sT)}, {s(sL)}, {XSZ}")
    A(f"s_lshl_b32 {s(sT2)}, {s(sHS)}, 6")
    A(f"s_add_u32 {s(sT)}, {s(sT)}, {s(sT2)}")
    A(f"s_lshl_b32 {s(sT2)}, {s(S_WAVE)}, 17")
    A(f"s_add_u32 {s(sT)}, {s(sT)}, {s(sT2)}")
    A(f"s_add_u32 {s(sT)}, {s(sT)}, {XF:#x}")
    A("v_lshrrev_b32 v14, 2, v0")
    A("v_and_b32 v15, 3, v0")
    A("v_lshlrev_b32 v15, 4, v15")
    A(f"s_mul_i32 {s(sT2)}, {s(S_WAVE)}, {16*80}")
    A(f"s_add_u32 {s(sT2)}, {s(sT2)}, {D_XO}")
    A("v_mul_u32_u24 v16, 80, v14")
    A(f"v_add3_u32 v16, v16, v15, {s(sT2)}")
    A("v_lshl_add_u32 v14, v14, 13, v15")
    mark(A, 12, sL, 150)
    for q in range(9):
        z = ACC + 4 * q
        A(f"v_cvt_pk_bf16_f32 {v(z)}, {v(z)}, {v(z+1)}")
        A(f"v_cvt_pk_bf16_f32 {v(z+1)}, {v(z+2)}, {v(z+3)}")
        A(f"ds_write_b64 v9, {v(z,2)} offset:{16*80*q}")
    A("s_waitcnt lgkmcnt(0)")
    A("s_barrier")
    for i in range(5):
        A(f"ds_read_b128 {v(20+4*i,4)}, v16 offset:{64*80*i}")
    sk = A.newlabel("f5")
    for i in range(5):
        if i == 4:
            A(f"s_cmp_ge_u32 {s(S_WAVE)}, 2")
            A(f"s_cbranch_scc1 {sk}")
        A(f"s_waitcnt lgkmcnt({4-i})")
        A(f"buffer_store_dwordx4 {v(20+4*i,4)}, v14, {s(S_WS,4)}, {s(sT)} offen sc1")
        A(f"s_add_u32 {s(sT)}, {s(sT)}, {64*8192}")
    A.label(sk)
    A("s_waitcnt lgkmcnt(0)")
    A(f"s_lshl_b32 {s(sT)}, {s(sL)}, 20")
    A(f"s_lshl_b32 {s(sT2)}, {s(sHS)}, 7")
    A(f"s_add_u32 {s(sT)}, {s(sT)}, {s(sT2)}")
    publish(A, sT, FLG + F_X, 14)

def inv_gather(A, job, hs):
    A("v_lshrrev_b32 v14, 2, v0")
    A("v_lshlrev_b32 v14, 13, v14")
    A("v_and_b32 v15, 3, v0")
    A("v_lshl_add_u32 v14, v15, 4, v14")
    A(f"s_mul_i32 {s(sT)}, {s(sL)}, {XSZ}")
    A(f"s_lshl_b32 {s(sT2)}, {s(hs)}, 6")
    A(f"s_add_u32 {s(sT)}, {s(sT)}, {s(sT2)}")
    A(f"s_min_u32 {s(sT2)}, {s(S_WAVE)}, 1")
    A(f"s_lshl_b32 {s(sT3)}, {s(sT2)}, 17")
    A(f"s_add_u32 {s(sT3)}, {s(sT3)}, {s(sT)}")
    A(f"s_add_u32 {s(sT3)}, {s(sT3)}, {YF + 4*64*8192:#x}")
    A(f"s_lshl_b32 {s(sK+5)}, {s(sT2)}, 10")
    A(f"s_lshl_b32 {s(sT2)}, {s(S_WAVE)}, 17")
    A(f"s_add_u32 {s(sT)}, {s(sT)}, {s(sT2)}")
    A(f"s_add_u32 {s(sT)}, {s(sT)}, {YF:#x}")
    A(f"s_lshl_b32 {s(sT2)}, {s(S_WAVE)}, 10")
    def go():
        for i in range(4):
            A(f"s_add_u32 m0, {s(sT2)}, {D_Y + YB*job + 4096*i}")
            A(f"buffer_load_dwordx4 v14, {s(S_WS,4)}, {s(sT)} offen sc1 lds")
            A(f"s_add_u32 {s(sT)}, {s(sT)}, {64*8192}")
        A(f"s_add_u32 m0, {s(sK+5)}, {D_Y + YB*job + 16384}")
        A(f"buffer_load_dwordx4 v14, {s(S_WS,4)}, {s(sT3)} offen sc1 lds")
    return go

def inv_rows(A):
    A(f"s_mul_i32 {s(sT)}, {s(sL)}, {XSZ}")
    A(f"s_mul_i32 {s(sRow)}, {s(sHS)}, {16*1152}")
    A(f"s_add_u32 {s(sT3)}, {s(sT)}, {s(sRow)}")
    A(f"s_add_u32 {s(sT3)}, {s(sT3)}, {X1:#x}")
    load_rows(A, 128, S_WS, sT3, " sc1")

def mark_first(A, idx, vt):
    import common
    if not common.MARKS: return
    sk = A.newlabel("mf")
    A(f"s_cmp_lg_u32 {s(sJob)}, 0")
    A(f"s_cbranch_scc1 {sk}")
    mark(A, idx, sL, vt)
    A.label(sk)

def inv_job(A, opt):
    R, X, tmp = 128, 40, 88
    mark(A, 10, sL, 154); mark_first(A, 32, 154)
    sk = A.newlabel("g2"); sk2 = A.newlabel("g3")
    A(f"s_cmp_lg_u32 {s(sJob)}, 0")
    A(f"s_cbranch_scc1 {sk}")
    A(f"s_add_u32 {s(sK+4)}, {s(sHS)}, {s(sStep)}")
    inv_gather(A, 1, sK + 4)()
    A(f"s_branch {sk2}")
    A.label(sk)
    inv_rows(A)
    A.label(sk2)
    A(f"s_mul_i32 {s(sT)}, {s(sJob)}, {YB}")
    A(f"v_add_u32 v14, {s(sT)}, v10")
    F, ACC = 16, 52
    for t in range(9):
        for j in range(2):
            A(f"ds_read_b64_tr_b16 {v(F+4*t+2*j,2)}, v14 offset:{(32*t+4*j)*64}")
        if t == 6: A("s_waitcnt lgkmcnt(8)")
    for t in range(9):
        A(f"s_waitcnt lgkmcnt({min(15, 2*(8-t))})")
        for q in range(9):
            d = v(ACC + 4 * q, 4)
            A(f"v_mfma_f32_16x16x32_bf16 {d}, {T(q,t)}, {v(F+4*t,4)}, {'0' if t == 0 else d}")
    for q in range(9):
        A(f"ds_write_b128 v11, {v(ACC+4*q,4)} offset:{64*q}")
    A("s_waitcnt lgkmcnt(0)")
    A("s_barrier")
    mark(A, 11, sL, 154); mark_first(A, 33, 154)
    E, O = 16, 92
    for i in range(3):
        for hf in range(2):
            A(f"ds_read_b128 {v(E+8*i+4*hf,4)}, v1 offset:{384*i + 16*hf}")
            A(f"ds_read_b128 {v(O+8*i+4*hf,4)}, v1 offset:{16*EOS + 384*i + 16*hf}")
    A("s_waitcnt vmcnt(0)")
    unpack(A, R, X, 24)
    A("s_waitcnt lgkmcnt(0)")
    Y = 116
    for i in range(3):
        for m in range(0, 8, 2):
            e, o = v(E + 8 * i + m, 2), v(O + 8 * i + m, 2)
            A(f"v_pk_add_f32 {v(Y,2)}, {e}, {o} neg_lo:[0,1] neg_hi:[0,1]")
            A(f"v_pk_add_f32 {v(Y+2,2)}, {e}, {o}")
            A(f"v_cvt_pk_bf16_f32 {v(Y)}, {v(Y)}, {v(Y+1)}")
            A(f"v_cvt_pk_bf16_f32 {v(Y+2)}, {v(Y+3)}, {v(Y+2)}")
            A(f"v_and_b32 {v(Y+1)}, 0xffff0000, {v(Y)}")
            A(f"v_lshlrev_b32 {v(Y)}, 16, {v(Y)}")
            A(f"v_and_b32 {v(Y+3)}, 0xffff0000, {v(Y+2)}")
            A(f"v_lshlrev_b32 {v(Y+2)}, 16, {v(Y+2)}")
            xa, xb = X + 16 * i + m, X + 16 * i + 8 + 6 - m
            A(f"v_pk_add_f32 {v(xa,2)}, {v(xa,2)}, {v(Y,2)}")
            A(f"v_pk_add_f32 {v(xb,2)}, {v(xb,2)}, {v(Y+2,2)}")
    for r in range(24):
        A(f"v_cvt_pk_bf16_f32 {v(R+r)}, {v(X+2*r)}, {v(X+2*r+1)}")
    mark(A, 12, sL, 154); mark_first(A, 34, 154)
    last = A.newlabel("ilast"); done = A.newlabel("idone")
    A(f"s_cmp_eq_u32 {s(sL)}, {opt.layers - 1}")
    A(f"s_cbranch_scc1 {last}")
    A(f"s_add_u32 {s(sT)}, {s(sRow)}, {X2:#x}")
    store_rows(A, R, S_WS, sT, " sc1")
    unpack(A, R, X, 24)
    ln_stats(A, X, tmp)
    mark_first(A, 35, 154)
    emit_xn(A, X, tmp, 16, 1)
    A(f"s_branch {done}")
    A.label(last)
    store_rows(A, R, S_B, sRow, "")
    A("s_barrier")
    A.label(done)

FSLEEP = [1, 0]
def dworker(A, opt):
    FSLEEP[0] = opt.dsleep; FSLEEP[1] = opt.osleep
    A("s_mul_i32 s6, s5, 14")
    A("s_add_u32 s6, s6, s4")
    A("s_sub_u32 s7, s6, 18")
    A("s_cmp_eq_u32 s5, 3")
    A(f"s_cselect_b32 {s(sRD)}, s6, s7")
    A(f"s_load_dwordx2 s[80:81], s[0:1], {KA_X}")
    A(f"s_load_dwordx4 s[84:87], s[0:1], {KA_WR}")
    A(f"s_load_dwordx2 s[82:83], s[0:1], {KA_OUT}")
    A(f"s_cmp_lt_u32 {s(sRD)}, 8")
    A(f"s_cselect_b32 {s(sIsF)}, 1, 0")
    A(f"s_cmp_ge_u32 {s(sRD)}, 72")
    A(f"s_cselect_b32 {s(sIsF)}, 2, {s(sIsF)}")
    A(f"s_lshl_b32 {s(sCol)}, {s(sRD)}, 2")
    A(f"s_add_u32 {s(sCol)}, {s(sCol)}, {s(S_WAVE)}")
    A("v_and_b32 v12, 15, v0")
    A("v_lshrrev_b32 v13, 4, v0")
    A("v_lshlrev_b32 v6, 4, v0")
    A(f"v_cmp_gt_u32 {s(sAct,2)}, 12, v12")
    A(f"s_lshl_b32 {s(sT)}, {s(S_WAVE)}, 2")
    A(f"v_add_u32 v14, {s(sT)}, v13")
    A("v_mov_b32 v16, 0x7ff00000")
    A("v_mul_u32_u24 v15, 1152, v14")
    A("v_lshl_add_u32 v2, v12, 4, v15")
    A("v_sub_u32 v17, 47, v12")
    A("v_lshl_add_u32 v3, v17, 4, v15")
    A(f"v_cndmask_b32 v2, v16, v2, {s(sAct,2)}")
    A(f"v_cndmask_b32 v3, v16, v3, {s(sAct,2)}")
    A(f"s_and_b32 {s(sT)}, {s(S_WAVE)}, 1")
    A(f"s_lshl_b32 {s(sT)}, {s(sT)}, 10")
    A(f"s_lshr_b32 {s(sT2)}, {s(S_WAVE)}, 1")
    A(f"s_lshl_b32 {s(sT2)}, {s(sT2)}, 6")
    A(f"s_add_u32 {s(sT)}, {s(sT)}, {s(sT2)}")
    A("v_lshlrev_b32 v18, 4, v13")
    A(f"v_add_u32 v18, {s(sT)}, v18")
    for dst, src in ((4, 12), (5, 17)):
        A(f"v_lshrrev_b32 v19, 2, {v(src)}")
        A(f"v_lshl_add_u32 {v(dst)}, v19, 11, v18")
        A(f"v_and_b32 v19, 3, {v(src)}")
        A(f"v_lshl_add_u32 {v(dst)}, v19, 8, {v(dst)}")
        A(f"v_cndmask_b32 {v(dst)}, v16, {v(dst)}, {s(sAct,2)}")
    A(f"v_mul_u32_u24 v7, {ERS}, v14")
    A("v_lshl_add_u32 v7, v12, 4, v7")
    A(f"v_add_u32 v7, {D_E}, v7")
    A(f"s_lshr_b32 {s(sT2)}, {s(S_WAVE)}, 1")
    A(f"s_mul_i32 {s(sT)}, {s(sT2)}, {16*ERS}")
    A(f"s_add_u32 {s(sT)}, {s(sT)}, {D_E}")
    A(f"v_mul_u32_u24 v8, {ERS}, v12")
    A("v_lshl_add_u32 v8, v13, 4, v8")
    A(f"v_add_u32 v8, {s(sT)}, v8")
    A(f"s_and_b32 {s(sT)}, {s(S_WAVE)}, 1")
    A(f"s_mul_i32 {s(sT3)}, {s(sT)}, {144*80}")
    A(f"s_lshl_b32 {s(sRow)}, {s(sT2)}, 5")
    A(f"s_add_u32 {s(sT3)}, {s(sT3)}, {s(sRow)}")
    A(f"s_add_u32 {s(sT3)}, {s(sT3)}, {D_XO}")
    A("v_mul_u32_u24 v9, 80, v12")
    A("v_lshl_add_u32 v9, v13, 3, v9")
    A(f"v_add_u32 v9, {s(sT3)}, v9")
    A("v_bfe_u32 v19, v0, 2, 2")
    A("v_lshl_add_u32 v10, v13, 3, v19")
    A("v_lshlrev_b32 v10, 6, v10")
    A("v_and_b32 v19, 3, v0")
    A("v_lshl_add_u32 v10, v19, 3, v10")
    A(f"s_add_u32 {s(sRow)}, {s(sRow)}, {D_Y}")
    A(f"v_add_u32 v10, {s(sRow)}, v10")
    A(f"s_mul_i32 {s(sT3)}, {s(sT2)}, {16*EOS}")
    A(f"s_mul_i32 {s(sRow)}, {s(sT)}, 576")
    A(f"s_add_u32 {s(sT3)}, {s(sT3)}, {s(sRow)}")
    A(f"s_add_u32 {s(sT3)}, {s(sT3)}, {D_EO}")
    A(f"v_mul_u32_u24 v11, {EOS}, v12")
    A("v_lshl_add_u32 v11, v13, 4, v11")
    A(f"v_add_u32 v11, {s(sT3)}, v11")
    A(f"v_mul_u32_u24 v1, {EOS}, v14")
    A("v_min_u32 v19, 11, v12")
    A("v_lshl_add_u32 v1, v19, 5, v1")
    A(f"v_add_u32 v1, {D_EO}, v1")
    A("s_waitcnt lgkmcnt(0)")
    build_srd(A, S_A, 80, XSZ)
    build_srd(A, S_B, 82, XSZ)
    build_srd(A, S_C, 84, 2048 * 289 * 2)
    build_srd(A, S_D, 86, 2048 * 289 * 2)
    A(f"s_mov_b32 {s(sL)}, 0")
    A(f"s_mov_b32 {s(sHS)}, {s(sRD)}")
    A(f"s_mul_i32 {s(sT)}, {s(sHS)}, {16*1152}")
    load_rows(A, 16, S_A, sT, "")
    wait_init(A, 88)
    A.label("L_d_ln0")
    A("s_waitcnt vmcnt(0)")
    unpack(A, 16, 40, 24)
    ln_stats(A, 40, 88)
    emit_xn(A, 40, 88, 16, 0)
    A(f"s_add_u32 {s(sHS)}, {s(sHS)}, 74")
    A(f"s_cmp_ge_u32 {s(sHS)}, 128")
    A("s_cbranch_scc1 L_d_ln0done")
    A(f"s_mul_i32 {s(sT)}, {s(sHS)}, {16*1152}")
    load_rows(A, 16, S_A, sT, "")
    A("s_branch L_d_ln0")
    A.label("L_d_ln0done")
    mark(A, 1, None, 16)
    gen_tables(A)
    A("s_barrier")
    A.label("L_d_layer")
    mark(A, 2, sL, 16)
    A(f"s_cmp_eq_u32 {s(sIsF)}, 0")
    A("s_cbranch_scc1 L_d_fft")
    A(f"s_add_u32 {s(sHS)}, {s(sRD)}, 2")
    A(f"s_cmp_lt_u32 {s(sRD)}, 2")
    A(f"s_cselect_b32 {s(sHS)}, {s(sRD)}, {s(sHS)}")
    A(f"s_sub_u32 {s(sT)}, {s(sRD)}, 70")
    A(f"s_cmp_eq_u32 {s(sIsF)}, 2")
    A(f"s_cselect_b32 {s(sHS)}, {s(sT)}, {s(sHS)}")
    A.label("L_d_fwd")
    fwd_job(A)
    A(f"s_add_u32 {s(sHS)}, {s(sHS)}, 10")
    A(f"s_cmp_lt_u32 {s(sHS)}, {128 - 2*ND}")
    A("s_cbranch_scc1 L_d_fwd")
    A(f"s_cmp_eq_u32 {s(sIsF)}, 2")
    A("s_cbranch_scc1 L_d_next")
    A.label("L_d_fft")
    mark(A, 4, sL, 16)
    fft_job(A)
    mark(A, 6, sL, 16)
    A(f"s_cmp_lg_u32 {s(sIsF)}, 0")
    A("s_cbranch_scc1 L_d_next")
    A(f"s_sub_u32 {s(sHS)}, {s(sRD)}, 8")
    A(f"s_lshl_b32 {s(sT)}, {s(sHS)}, 1")
    A(f"s_cmp_eq_u32 {s(sL)}, {opt.layers - 1}")
    A(f"s_cselect_b32 {s(sHS)}, {s(sT)}, {s(sHS)}")
    A(f"s_cselect_b32 {s(sStep)}, 1, 64")
    A(f"s_mov_b32 {s(sJob)}, 0")
    inv_rows(A)
    go = inv_gather(A, 0, sHS)
    A(f"s_lshl_b32 {s(sK+4)}, {s(sL)}, 20")
    A(f"s_add_u32 {s(sK+4)}, {s(sK+4)}, {FLG + F_Y:#x}")
    wait_flags(A, sK + 4, 72, 16, sleep=0)
    go()
    mark(A, 7, sL, 16)
    A("s_waitcnt vmcnt(0)")
    A("s_barrier")
    A.label("L_d_inv")
    mark(A, 8, sL, 16)
    inv_job(A, opt)
    A(f"s_add_u32 {s(sHS)}, {s(sHS)}, {s(sStep)}")
    A(f"s_add_u32 {s(sJob)}, {s(sJob)}, 1")
    A(f"s_cmp_lt_u32 {s(sJob)}, 2")
    A("s_cbranch_scc1 L_d_inv")
    A.label("L_d_next")
    mark(A, 9, sL, 16)
    A(f"s_add_u32 {s(sL)}, {s(sL)}, 1")
    A(f"s_cmp_lt_u32 {s(sL)}, {opt.layers}")
    A("s_cbranch_scc1 L_d_layer")
    A("s_branch L_exit")
```

```python
from common import *
from pwork import load_frag_weights, wait_init, set_flag

sG, sB, sL, sHS, sT, sPA, sPB, sT2, sPar, sRow = range(41, 51)

def oworker(A, opt):
    A(f"s_load_dwordx2 s[80:81], s[0:1], {KA_WO}")
    A(f"s_load_dwordx2 s[82:83], s[0:1], {KA_X}")
    A("v_and_b32 v12, 15, v0")
    A("v_lshrrev_b32 v13, 4, v0")
    A(f"v_mul_u32_u24 v15, {8*1152}, v13")
    A("v_lshl_add_u32 v15, v12, 2, v15")
    A(f"s_mul_i32 {s(sT)}, {s(S_WAVE)}, {1024*1152}")
    A(f"s_lshl_b32 {s(sT2)}, {s(sB)}, 6")
    A(f"s_add_u32 {s(sT)}, {s(sT)}, {s(sT2)}")
    A(f"v_add_u32 v15, {s(sT)}, v15")
    A(f"s_mov_b32 {s(sPA)}, 0x05040100")
    A(f"s_mov_b32 {s(sPB)}, 0x07060302")
    A("s_waitcnt lgkmcnt(0)")
    build_srd(A, S_A, 80, 576 * 4096 * 2)
    build_srd(A, S_B, 82, XSZ)
    load_frag_weights(A, list(range(32)), lambda k: S_A, lambda k, i: (32 * k + i) * 1152,
                      lambda k, par, d: ("a", (k * 2 + par) * 4 + d), 15, sPA, sPB, sT)
    A("v_lshlrev_b32 v6, 4, v0")
    A("v_and_b32 v2, 7, v0")
    A("v_lshlrev_b32 v2, 7, v2")
    A(f"s_lshl_b32 {s(sT)}, {s(S_WAVE)}, 10")
    A(f"v_add_u32 v2, {s(sT)}, v2")
    A("v_mul_u32_u24 v3, 1152, v12")
    A("v_lshl_add_u32 v3, v13, 4, v3")
    A(f"v_add_u32 v3, {s(sT2)}, v3")
    A(f"s_lshl_b32 {s(sT)}, {s(S_WAVE)}, 11")
    A(f"v_add_u32 v4, {s(sT)}, v6")
    wait_init(A, 16)
    A(f"s_mov_b32 {s(sL)}, 0")
    A(f"s_mov_b32 {s(sPar)}, 0")
    A.label("L_o_layer")
    mark(A, 1, sL, 16)
    A(f"s_mov_b32 {s(sHS)}, {s(sG)}")
    A.label("L_o_loop")
    A(f"s_lshr_b32 {s(sT)}, {s(sHS)}, 1")
    A(f"s_lshl_b32 {s(sT)}, {s(sT)}, 12")
    A(f"s_lshl_b32 {s(sT2)}, {s(sL)}, 20")
    A(f"s_add_u32 {s(sT)}, {s(sT)}, {s(sT2)}")
    A(f"s_add_u32 {s(sT)}, {s(sT)}, {FLG + F_O:#x}")
    A(f"s_mov_b32 {s(S_CNT)}, 0")
    lp = A.newlabel("of")
    A.label(lp)
    spin_check(A)
    if opt.osleep: A(f"s_sleep {opt.osleep}")
    A(f"buffer_load_dword v16, v2, {s(S_WS,4)}, {s(sT)} offen sc1")
    A("s_waitcnt vmcnt(0)")
    A("v_cmp_eq_u32 vcc, 0, v16")
    A(f"s_cbranch_vccnz {lp}")
    mark(A, 2, sL, 16)
    A(f"s_lshl_b32 {s(sT)}, {s(sHS)}, 17")
    A(f"s_lshl_b32 {s(sT2)}, {s(S_WAVE)}, 15")
    A(f"s_add_u32 {s(sT)}, {s(sT)}, {s(sT2)}")
    A(f"s_lshl_b32 {s(sT2)}, {s(sL)}, 24")
    A(f"s_add_u32 {s(sT)}, {s(sT)}, {s(sT2)}")
    A(f"s_add_u32 {s(sT)}, {s(sT)}, {OF:#x}")
    for t in range(32):
        A(f"buffer_load_dwordx4 {v(64+4*t,4)}, v6, {s(S_WS,4)}, {s(sT)} offen offset:{1024*(t%4)} sc1")
        if t % 4 == 3: A(f"s_add_u32 {s(sT)}, {s(sT)}, 4096")
    A(f"s_mul_i32 {s(sRow)}, {s(sHS)}, {16*1152}")
    l1 = A.newlabel("ol1"); lj = A.newlabel("olj")
    A(f"s_cmp_lg_u32 {s(sL)}, 0")
    A(f"s_cbranch_scc1 {l1}")
    A(f"buffer_load_dwordx4 v[24:27], v3, {s(S_B,4)}, {s(sRow)} offen")
    A(f"s_branch {lj}")
    A.label(l1)
    A(f"s_add_u32 {s(sT)}, {s(sRow)}, {X2:#x}")
    A(f"buffer_load_dwordx4 v[24:27], v3, {s(S_WS,4)}, {s(sT)} offen sc1")
    A.label(lj)
    for t in range(32):
        A(f"s_waitcnt vmcnt({32-t})")
        for par in range(2):
            d = v(16 + 4 * par, 4)
            A(f"v_mfma_f32_16x16x32_bf16 {d}, {a((t*2+par)*4,4)}, {v(64+4*t,4)}, {'0' if t == 0 else d}")
    mark(A, 4, sL, 30)
    A(f"v_add_u32 v5, {s(sPar)}, v4")
    A("ds_write_b128 v5, v[16:19]")
    A("ds_write_b128 v5, v[20:23] offset:1024")
    A("s_waitcnt lgkmcnt(0)")
    A("s_barrier")
    A(f"s_cmp_lg_u32 {s(S_WAVE)}, 0")
    A("s_cbranch_scc1 L_o_next")
    for w in range(1, 4):
        A(f"ds_read_b128 {v(24+8*w,4)}, v5 offset:{2048*w}")
        A(f"ds_read_b128 {v(28+8*w,4)}, v5 offset:{2048*w+1024}")
    A("s_waitcnt lgkmcnt(0)")
    for r in range(0, 8, 2):
        A(f"v_pk_add_f32 {v(16+r,2)}, {v(16+r,2)}, {v(32+r,2)}")
        A(f"v_pk_add_f32 {v(40+r,2)}, {v(40+r,2)}, {v(48+r,2)}")
    for r in range(0, 8, 2):
        A(f"v_pk_add_f32 {v(16+r,2)}, {v(16+r,2)}, {v(40+r,2)}")
    A("s_waitcnt vmcnt(0)")
    for r in range(4):
        A(f"v_cvt_pk_bf16_f32 {v(16+r)}, {v(16+r)}, {v(20+r)}")
    for r in range(4):
        A(f"v_lshlrev_b32 v32, 16, {v(16+r)}")
        A(f"v_and_b32 v33, 0xffff0000, {v(16+r)}")
        A(f"v_lshlrev_b32 v34, 16, {v(24+r)}")
        A(f"v_and_b32 v35, 0xffff0000, {v(24+r)}")
        A("v_pk_add_f32 v[32:33], v[32:33], v[34:35]")
        A(f"v_cvt_pk_bf16_f32 {v(16+r)}, v32, v33")
    A(f"s_mul_i32 {s(sT)}, {s(sL)}, {XSZ}")
    A(f"s_add_u32 {s(sT)}, {s(sT)}, {s(sRow)}")
    A(f"s_add_u32 {s(sT)}, {s(sT)}, {X1:#x}")
    A(f"buffer_store_dwordx4 v[16:19], v3, {s(S_WS,4)}, {s(sT)} offen sc1")
    nf = A.newlabel("onf")
    A(f"s_cmp_lt_u32 {s(sHS)}, 124")
    A(f"s_cbranch_scc1 {nf}")
    A(f"s_lshl_b32 {s(sT)}, {s(sL)}, 2")
    A(f"s_add_u32 {s(sT)}, {s(sT)}, {s(sHS)}")
    A(f"s_mul_i32 {s(sT)}, {s(sT)}, 18")
    A(f"s_add_u32 {s(sT)}, {s(sT)}, {s(sB)}")
    A(f"s_lshl_b32 {s(sT)}, {s(sT)}, 10")
    A(f"s_add_u32 {s(sT)}, {s(sT)}, {X1F - 124*18*1024:#x}")
    A(f"buffer_store_dwordx4 v[16:19], v6, {s(S_WS,4)}, {s(sT)} offen sc1")
    A.label(nf)
    A(f"s_mul_i32 {s(sT)}, {s(sHS)}, 18")
    A(f"s_add_u32 {s(sT)}, {s(sT)}, {s(sB)}")
    A(f"s_lshl_b32 {s(sT)}, {s(sT)}, 7")
    A(f"s_lshl_b32 {s(sT2)}, {s(sL)}, 20")
    A(f"s_add_u32 {s(sT)}, {s(sT)}, {s(sT2)}")
    A(f"s_add_u32 {s(sT)}, {s(sT)}, {FLG + F_X1:#x}")
    A("s_waitcnt vmcnt(0)")
    set_flag(A, sT, 32)
    mark(A, 3, sL, 16)
    A.label("L_o_next")
    A(f"s_xor_b32 {s(sPar)}, {s(sPar)}, 8192")
    A(f"s_add_u32 {s(sHS)}, {s(sHS)}, 3")
    A(f"s_cmp_lt_u32 {s(sHS)}, 128")
    A("s_cbranch_scc1 L_o_loop")
    A(f"s_add_u32 {s(sL)}, {s(sL)}, 1")
    A(f"s_cmp_lt_u32 {s(sL)}, {opt.layers}")
    A("s_cbranch_scc1 L_o_layer")
    A("s_branch L_exit")
```

```python
from asmlib import *

NAME = "interleave_layers__memory_aug_recurrent_mem_tr__spectral_gfnet__prompt"

FLG = 0x1800000
FL_STRIDE = 0x100000
F_XN, F_X, F_Y, F_KV, F_O, F_X1 = [128 * i for i in (0, 128, 256, 512, 2560, 4608)]
MENT = 9216
MARCH = 0x020000
MCH = 0x140000
PART = 0x150000
PSLOT = 80 * 4096
DBGW = 0x2F0000
XN = 0x320000
XSZ = 0x240000
X1 = 0x7A0000
X2 = 0xC20000
XF = 0xE60000
YF = 0x12E0000
X1F = 0x1A00000
KF = 0x2000000
VF = 0x4000000
OF = 0x6000000
BIG = 0x1000000
WS_SIZE = 0x10000000

KA_X, KA_MEM0, KA_WQ, KA_WK, KA_WV, KA_WO, KA_SEG, KA_BX, KA_WR, KA_WI, KA_OUT, KA_DBG, KA_WS = [8 * i for i in range(13)]

S_WS = 8
S_DBG = 12
S_A = 16
S_B = 20
S_C = 24
S_D = 28
S_WAVE = 32
S_ROLE = 33
S_T0 = 34
S_CNT = 40
SPIN_MAX = 0x100000

class Q:
    def __init__(self, asm, name, mx):
        self.a = asm; self.name = name; self.mx = mx; self.tags = []
    def push(self, tag=None):
        self.tags.append(tag)
    def wait(self, tag):
        if tag not in self.tags:
            return
        k = len(self.tags) - 1 - max(i for i, t in enumerate(self.tags) if t == tag)
        k = min(k, self.mx)
        self.a(f"s_waitcnt {self.name}({k})")
        self.tags = self.tags[len(self.tags) - k:] if k else []
    def drain(self):
        self.a(f"s_waitcnt {self.name}(0)")
        self.tags = []
    def reset(self):
        self.tags = []

def build_srd(A, d, ka_pair, size):
    A(f"s_mov_b32 {s(d)}, {s(ka_pair)}")
    A(f"s_and_b32 {s(d+1)}, {s(ka_pair+1)}, 0xffff")
    A(f"s_mov_b32 {s(d+2)}, {size:#x}")
    A(f"s_mov_b32 {s(d+3)}, 0x20000")

def load_srd(A, d, ka_off, size, tmp=S_T0):
    A(f"s_load_dwordx2 {s(tmp,2)}, s[0:1], {ka_off}")
    A("s_waitcnt lgkmcnt(0)")
    build_srd(A, d, tmp, size)

def spin_check(A, abort="L_abort"):
    A(f"s_add_u32 {s(S_CNT)}, {s(S_CNT)}, 1")
    A(f"s_cmp_gt_u32 {s(S_CNT)}, {SPIN_MAX:#x}")
    A(f"s_cbranch_scc1 {abort}")

def wait_flags(A, soff, n, tmp, sleep=1, pre=None, drain=False, two=False):
    sk = A.newlabel("wfs")
    A(f"s_cmp_lg_u32 {s(S_WAVE)}, 0")
    A(f"s_cbranch_scc1 {sk}")
    A(f"s_mov_b32 {s(S_CNT)}, 0")
    if pre is not None:
        lp = A.newlabel("wfp")
        A(f"v_mov_b32 {v(tmp)}, {128*pre}")
        A.label(lp)
        spin_check(A)
        A(f"s_sleep {sleep}")
        A(f"buffer_load_dword {v(tmp+2)}, {v(tmp)}, {s(S_WS,4)}, {s(soff)} offen sc1")
        A("s_waitcnt vmcnt(0)")
        A(f"v_cmp_eq_u32 vcc, 0, {v(tmp+2)}")
        A(f"s_cbranch_vccnz {lp}")
    lp = A.newlabel("wf"); ent = A.newlabel("wfe")
    A(f"v_min_u32 {v(tmp)}, {min(n, 64)-1}, v0")
    A(f"v_lshlrev_b32 {v(tmp)}, 7, {v(tmp)}")
    if n > 64:
        A(f"v_add_u32 {v(tmp+1)}, 64, v0")
        A(f"v_min_u32 {v(tmp+1)}, {n-1}, {v(tmp+1)}")
        A(f"v_lshlrev_b32 {v(tmp+1)}, 7, {v(tmp+1)}")
    def rnd():
        A(f"buffer_load_dword {v(tmp+2)}, {v(tmp)}, {s(S_WS,4)}, {s(soff)} offen sc1")
        if n > 64:
            A(f"buffer_load_dword {v(tmp+3)}, {v(tmp+1)}, {s(S_WS,4)}, {s(soff)} offen sc1")
    if two:
        rnd()
        A("s_sleep 4")
        A.label(lp)
        spin_check(A)
        rnd()
        A(f"s_waitcnt vmcnt({2 if n > 64 else 1})")
    else:
        A(f"s_branch {ent}")
        A.label(lp)
        spin_check(A)
        if sleep and pre is None: A(f"s_sleep {sleep}")
        A.label(ent)
        rnd()
        A("s_waitcnt vmcnt(0)")
    if n > 64:
        A(f"v_min_u32 {v(tmp+4)}, {v(tmp+2)}, {v(tmp+3)}")
    A(f"v_cmpx_eq_u32 vcc, 0, {v(tmp + (4 if n > 64 else 2))}")
    A(f"s_cbranch_execnz {lp}")
    A("s_mov_b64 exec, -1")
    A.label(sk)
    if drain: A(f"s_waitcnt vmcnt({2 if two else 0})")
    A("s_barrier")

def wave_wait_flags(A, soff, n, tmp, sleep=0):
    lp = A.newlabel("ww")
    A(f"s_mov_b32 {s(S_CNT)}, 0")
    A(f"v_min_u32 {v(tmp)}, {n-1}, v0")
    A(f"v_lshlrev_b32 {v(tmp)}, 7, {v(tmp)}")
    A.label(lp)
    spin_check(A)
    if sleep: A(f"s_sleep {sleep}")
    A(f"buffer_load_dword {v(tmp+1)}, {v(tmp)}, {s(S_WS,4)}, {s(soff)} offen sc1")
    A("s_waitcnt vmcnt(0)")
    A(f"v_cmpx_eq_u32 vcc, 0, {v(tmp+1)}")
    A(f"s_cbranch_execnz {lp}")
    A("s_mov_b64 exec, -1")

MARKS = False
def mark(A, idx, layer_sgpr=None, vt=255):
    import common
    if not common.MARKS:
        return
    A("s_memrealtime s[100:101]")
    A(f"s_lshl_b32 s98, {s(S_ROLE)}, 8")
    if layer_sgpr is not None:
        A(f"s_lshl_b32 s99, {s(layer_sgpr)}, 6")
        A("s_add_u32 s98, s98, s99")
    A(f"s_add_u32 s98, s98, {DBGW + 0x8000:#x}")
    A("s_waitcnt lgkmcnt(0)")
    A(f"v_mov_b32 {v(vt)}, s100")
    A(f"buffer_store_dword {v(vt)}, off, {s(S_WS,4)}, s98 offset:{4*idx}")
```

```python
from common import *
from chain import f2u
from pwork import wait_init, set_flag
import math

D_F64 = 0
D_F32 = 24576
D_T1 = 30720
D_T2 = 47104
D_TD = 63488
D_JOB = 81920
ND = 2
D_SC = D_JOB + 36864
D_COL = D_JOB
D_E = D_JOB
ERS = 608
D_XO = D_JOB + 20480
D_Y = D_JOB
YB = 18432
D_EO = D_JOB + 2 * YB
EOS = 1168

sRD, sL, sHS, sT, sT2, sIsF, sCol, sStep, sRow, sT3 = range(41, 51)
sJob = 51
sAct = 52
sM1 = 54
sK = 56
TB = 188
FILT = 156

def T(q, t):
    i = (q * 9 + t) * 4
    return a(i, 4) if i < 256 else v(TB + i - 256, 4)

def ln_stats(A, X, tmp):
    t0 = tmp
    A(f"v_pk_add_f32 {v(t0,2)}, {v(X,2)}, {v(X+2,2)}")
    A(f"v_pk_add_f32 {v(t0+2,2)}, {v(X+4,2)}, {v(X+6,2)}")
    for r in range(8, 48, 4):
        A(f"v_pk_add_f32 {v(t0,2)}, {v(t0,2)}, {v(X+r,2)}")
        A(f"v_pk_add_f32 {v(t0+2,2)}, {v(t0+2,2)}, {v(X+r+2,2)}")
    A(f"v_pk_add_f32 {v(t0,2)}, {v(t0,2)}, {v(t0+2,2)}")
    A(f"v_add_f32 {v(t0)}, {v(t0)}, {v(t0+1)}")
    A(f"v_cndmask_b32 {v(t0)}, 0, {v(t0)}, {s(sAct,2)}")
    def rowsum():
        for sh in (8, 4, 2, 1):
            A(f"v_add_f32_dpp {v(t0)}, {v(t0)}, {v(t0)} row_ror:{sh} row_mask:0xf bank_mask:0xf")
    rowsum()
    A(f"v_mul_f32 {v(t0)}, {f2u(-1.0/576):#x}, {v(t0)}")
    for r in range(0, 48, 2):
        A(f"v_pk_add_f32 {v(X+r,2)}, {v(X+r,2)}, {v(t0,2)} op_sel_hi:[1,0]")
    A(f"v_pk_mul_f32 {v(t0,2)}, {v(X,2)}, {v(X,2)}")
    A(f"v_pk_mul_f32 {v(t0+2,2)}, {v(X+2,2)}, {v(X+2,2)}")
    for r in range(4, 48, 4):
        A(f"v_pk_fma_f32 {v(t0,2)}, {v(X+r,2)}, {v(X+r,2)}, {v(t0,2)}")
        A(f"v_pk_fma_f32 {v(t0+2,2)}, {v(X+r+2,2)}, {v(X+r+2,2)}, {v(t0+2,2)}")
    A(f"v_pk_add_f32 {v(t0,2)}, {v(t0,2)}, {v(t0+2,2)}")
    A(f"v_add_f32 {v(t0)}, {v(t0)}, {v(t0+1)}")
    A(f"v_cndmask_b32 {v(t0)}, 0, {v(t0)}, {s(sAct,2)}")
    rowsum()
    def rnd():
        A(f"v_cvt_pk_bf16_f32 {v(t0)}, {v(t0)}, {v(t0)}")
        A(f"v_lshlrev_b32 {v(t0)}, 16, {v(t0)}")
    A(f"v_mul_f32 {v(t0)}, {f2u(1.0/576):#x}, {v(t0)}")
    rnd()
    A(f"v_add_f32 {v(t0)}, {f2u(1e-5):#x}, {v(t0)}")
    rnd()
    A(f"v_sqrt_f32 {v(t0)}, {v(t0)}")
    rnd()
    A(f"v_rcp_f32 {v(t0)}, {v(t0)}")

def unpack(A, src, dst, n):
    for i in range(n):
        A(f"v_lshlrev_b32 {v(dst+2*i)}, 16, {v(src+i)}")
        A(f"v_and_b32 {v(dst+2*i+1)}, 0xffff0000, {v(src+i)}")

def load_rows(A, R, srd, soff, sc):
    for i in range(3):
        A(f"buffer_load_dwordx4 {v(R+8*i,4)}, v2, {s(srd,4)}, {s(soff)} offen offset:{192*i}{sc}")
        A(f"buffer_load_dwordx4 {v(R+8*i+4,4)}, v3, {s(srd,4)}, {s(soff)} offen offset:{192*(2-i)}{sc}")

def store_rows(A, R, srd, soff, sc):
    for i in range(3):
        A(f"buffer_store_dwordx4 {v(R+8*i,4)}, v2, {s(srd,4)}, {s(soff)} offen offset:{192*i}{sc}")
        A(f"buffer_store_dwordx4 {v(R+8*i+4,4)}, v3, {s(srd,4)}, {s(soff)} offen offset:{192*(2-i)}{sc}")

def emit_xn(A, X, tmp, R, layer_sgpr_plus):
    for r in range(0, 48, 2):
        A(f"v_pk_mul_f32 {v(X+r,2)}, {v(X+r,2)}, {v(tmp,2)} op_sel_hi:[1,0]")
    for i in range(24):
        A(f"v_cvt_pk_bf16_f32 {v(R+i)}, {v(X+2*i)}, {v(X+2*i+1)}")
    A(f"s_lshr_b32 {s(sT)}, {s(sHS)}, 1")
    A(f"s_mul_i32 {s(sT)}, {s(sT)}, 36864")
    A(f"s_and_b32 {s(sT2)}, {s(sHS)}, 1")
    A(f"s_lshl_b32 {s(sT2)}, {s(sT2)}, 7")
    A(f"s_add_u32 {s(sT)}, {s(sT)}, {s(sT2)}")
    A(f"s_add_u32 {s(sT2)}, {s(sL)}, {layer_sgpr_plus}")
    A(f"s_mul_i32 {s(sT3)}, {s(sT2)}, {XSZ}")
    A(f"s_add_u32 {s(sT)}, {s(sT)}, {s(sT3)}")
    A(f"s_add_u32 {s(sT)}, {s(sT)}, {XN:#x}")
    for i in range(3):
        A(f"s_add_u32 {s(sT3)}, {s(sT)}, {6144*i}")
        A(f"buffer_store_dwordx4 {v(R+8*i,4)}, v4, {s(S_WS,4)}, {s(sT3)} offen sc1")
        A(f"buffer_store_dwordx4 {v(R+8*(2-i)+4,4)}, v5, {s(S_WS,4)}, {s(sT3)} offen sc1")
    A(f"s_lshl_b32 {s(sT)}, {s(sT2)}, 20")
    A(f"s_lshl_b32 {s(sT2)}, {s(sHS)}, 7")
    A(f"s_add_u32 {s(sT)}, {s(sT)}, {s(sT2)}")
    publish(A, sT, FLG + F_XN, tmp)

def publish(A, soff, imm, tmp):
    sk = A.newlabel("df")
    A(f"s_add_u32 {s(soff)}, {s(soff)}, {imm:#x}")
    A("s_waitcnt vmcnt(0)")
    A("s_barrier")
    A(f"s_cmp_lg_u32 {s(S_WAVE)}, 0")
    A(f"s_cbranch_scc1 {sk}")
    set_flag(A, soff, tmp)
    A.label(sk)

def gen_tables(A):
    A(f"s_cmp_ge_u32 {s(S_WAVE)}, 2")
    A(f"s_cselect_b32 {s(sT)}, 1, 0")
    A(f"s_cmp_lg_u32 {s(sIsF)}, 0")
    A(f"s_mov_b32 {s(sK)}, {f2u(-0.25):#x}")
    A(f"s_cselect_b32 {s(sK)}, {f2u(0.25):#x}, {s(sK)}")
    A(f"s_cselect_b32 {s(sK+1)}, 0, {f2u(1.0/1152):#x}")
    A(f"s_cselect_b32 {s(sK+2)}, {f2u(1.0/1152):#x}, 0")
    A(f"s_cmp_lg_u32 {s(sT)}, 0")
    A(f"s_cselect_b32 {s(sK)}, {s(sK)}, 0")
    A(f"s_cselect_b32 {s(sK+3)}, {f2u(0.5):#x}, 0")
    A(f"s_and_b32 {s(sT2)}, {s(S_WAVE)}, 1")
    A(f"s_mul_i32 {s(sT2)}, {s(sT2)}, 144")
    A(f"v_add_u32 v16, {s(sT2)}, v12")
    A("v_lshlrev_b32 v17, 3, v13")
    A("v_cvt_f32_u32 v17, v17")
    A("v_cmp_eq_u32 vcc, 0, v16")
    A(f"s_cmp_lg_u32 {s(sIsF)}, 0")
    A(f"s_cselect_b64 {s(sM1,2)}, vcc, 0")
    A("v_mov_b32 v18, 288")
    A(f"v_cndmask_b32 v18, v16, v18, {s(sM1,2)}")
    A(f"s_cmp_lg_u32 {s(sT)}, 0")
    A(f"s_cselect_b64 {s(sM1,2)}, 0, {s(sM1,2)}")
    A("v_mov_b32 v19, 1.0")
    A(f"v_cndmask_b32 v19, v19, 0, {s(sM1,2)}")
    A("v_cmp_eq_u32 vcc, 0, v13")
    A(f"s_cmp_lg_u32 {s(sIsF)}, 0")
    A(f"s_cselect_b64 {s(sM1,2)}, 0, vcc")
    A("v_lshlrev_b32 v20, 31, v12")
    A(f"v_xor_b32 v20, {s(sK+3)}, v20")
    for q in range(9):
        if q == 0:
            A("v_cvt_f32_u32 v21, v18")
        else:
            A(f"v_add_u32 v21, {16*q}, v16")
            A("v_cvt_f32_u32 v21, v21")
        A(f"v_mov_b32 v22, {s(sK+1)}")
        A(f"v_fmac_f32 v22, {f2u(2.0/1152):#x}, v21")
        A(f"v_mov_b32 v23, {s(sK)}")
        A(f"v_fmac_f32 v23, {s(sK+2)}, v21")
        A("v_fmac_f32 v23, v17, v22")
        for t in range(9):
            for i in range(8):
                b = 32 * t + i
                if b == 0:
                    A(f"v_cos_f32 {v(24+i)}, v23")
                else:
                    A(f"v_fmamk_f32 {v(24+i)}, v22, {f2u(float(b)):#x}, v23")
                    A(f"v_cos_f32 {v(24+i)}, {v(24+i)}")
            if q == 0:
                for i in range(0, 8):
                    A(f"v_mul_f32 {v(24+i)}, v19, {v(24+i)}")
            if t == 0:
                A(f"v_cndmask_b32 v24, v24, v20, {s(sM1,2)}")
            idx = (q * 9 + t) * 4
            for d in range(4):
                if idx < 256:
                    A(f"v_cvt_pk_bf16_f32 {v(24+2*d)}, {v(24+2*d)}, {v(25+2*d)}")
                    A(f"v_accvgpr_write_b32 {a(idx+d)}, {v(24+2*d)}")
                else:
                    A(f"v_cvt_pk_bf16_f32 {v(TB+idx-256+d)}, {v(24+2*d)}, {v(25+2*d)}")
    A("v_and_b32 v16, 31, v0")
    A("v_cvt_f32_u32 v16, v16")
    A("v_lshrrev_b32 v17, 5, v0")
    A("v_lshlrev_b32 v17, 2, v17")
    A("v_cvt_f32_u32 v17, v17")
    A(f"v_cvt_f32_u32 v18, {s(S_WAVE)}")
    A(f"s_lshl_b32 {s(sT)}, {s(S_WAVE)}, 10")
    A(f"v_add_u32 v19, {s(sT)}, v6")
    A("v_mov_b32 v20, v17")
    A(f"v_fmac_f32 v20, {f2u(16.0):#x}, v18")
    def trio(u, base, off, stride):
        for i in range(8):
            A(f"v_add_f32 {v(24+i)}, {f2u(float(8*(i>>2)+(i&3))):#x}, {v(base)}")
            A(f"v_mul_f32 {v(24+i)}, {v(24+i)}, {v(u)}")
            A(f"v_sin_f32 {v(32+i)}, {v(24+i)}")
            A(f"v_cos_f32 {v(24+i)}, {v(24+i)}")
        for d in range(4):
            A(f"v_cvt_pk_bf16_f32 {v(40+d)}, {v(24+2*d)}, {v(25+2*d)}")
            A(f"v_cvt_pk_bf16_f32 {v(44+d)}, {v(32+2*d)}, {v(33+2*d)}")
            A(f"v_xor_b32 {v(48+d)}, 0x80008000, {v(44+d)}")
        for k in range(3):
            A(f"ds_write_b128 v19, {v(40+4*k,4)} offset:{off + stride*k}")
        A("s_waitcnt lgkmcnt(0)")
    for tl in range(2):
        A(f"v_add_f32 v21, {f2u(32.0*tl):#x}, v16")
        A(f"v_mul_f32 v21, {f2u(1.0/64):#x}, v21")
        trio(21, 20, D_F64 + 4096 * tl, 8192)
    sk = A.newlabel("nf32")
    A(f"s_cmp_ge_u32 {s(S_WAVE)}, 2")
    A(f"s_cbranch_scc1 {sk}")
    A(f"v_mul_f32 v21, {f2u(1.0/32):#x}, v16")
    trio(21, 20, D_F32, 2048)
    A.label(sk)
    A(f"s_lshl_b32 {s(sT)}, {s(S_WAVE)}, 11")
    A(f"v_add_u32 v19, {s(sT)}, v6")
    A("v_mov_b32 v20, v17")
    A(f"v_fmac_f32 v20, {f2u(8.0):#x}, v18")
    scale = 2.0 / 576 / 2048
    for tbl in range(2):
        for tl in range(2):
            if tbl == 0:
                A(f"v_add_f32 v21, {f2u(32.0*tl):#x}, v16")
                radd = 0
            else:
                A("v_mov_b32 v21, v16")
                radd = 32 * tl
            A(f"v_mul_f32 v21, {f2u(1.0/2048):#x}, v21")
            for r in range(4):
                A(f"v_add_f32 {v(24+r)}, {f2u(float(r+radd)):#x}, v20")
                A(f"v_mul_f32 {v(24+r)}, {v(24+r)}, v21")
                A(f"v_sin_f32 {v(28+r)}, {v(24+r)}")
                A(f"v_cos_f32 {v(24+r)}, {v(24+r)}")
            if tbl == 1:
                for r in range(8):
                    A(f"v_mul_f32 {v(24+r)}, {f2u(scale):#x}, {v(24+r)}")
            off = (D_T1, D_T2)[tbl] + 8192 * tl
            A(f"ds_write_b128 v19, v[24:27] offset:{off}")
            A(f"ds_write_b128 v19, v[28:31] offset:{off + 1024}")
            A("s_waitcnt lgkmcnt(0)")
    A("v_lshrrev_b32 v16, 1, v12")
    A(f"s_lshl_b32 {s(sT)}, {s(sRD)}, 2")
    A(f"v_add_u32 v16, {s(sT)}, v16")
    A("v_and_b32 v17, 1, v12")
    A("v_or_b32 v19, v16, v17")
    A("v_cmp_eq_u32 vcc, 0, v16")
    A("v_mov_b32 v20, 288")
    A("v_cndmask_b32 v16, v16, v20, vcc")
    A("v_cmp_gt_u32 vcc, 8, v12")
    A("v_cndmask_b32 v16, 0, v16, vcc")
    A("v_cvt_f32_u32 v16, v16")
    A("v_cvt_f32_u32 v17, v17")
    A("v_mov_b32 v21, 1.0")
    A("v_cmp_ne_u32 vcc, 0, v19")
    A("v_cndmask_b32 v21, 0, v21, vcc")
    A("v_cmp_ge_u32 vcc, 8, v12")
    A("v_cndmask_b32 v21, 0, v21, vcc")
    A(f"v_mul_f32 v22, {f2u(2.0/1152):#x}, v16")
    A(f"v_mul_f32 v23, {f2u(1.0/1152):#x}, v16")
    A(f"v_fmac_f32 v23, {f2u(0.25):#x}, v17")
    A("v_lshlrev_b32 v17, 3, v13")
    A(f"s_lshl_b32 {s(sT)}, {s(S_WAVE)}, 5")
    A(f"v_add_u32 v17, {s(sT)}, v17")
    A("v_cvt_f32_u32 v17, v17")
    A("v_fmac_f32 v23, v17, v22")
    A(f"s_lshl_b32 {s(sT)}, {s(S_WAVE)}, 10")
    A(f"s_add_u32 {s(sT)}, {s(sT)}, {D_TD}")
    A(f"v_add_u32 v19, {s(sT)}, v6")
    sk = A.newlabel("td5")
    for j in range(5):
        if j == 4:
            A(f"s_cmp_ge_u32 {s(S_WAVE)}, 2")
            A(f"s_cbranch_scc1 {sk}")
        for i in range(8):
            A(f"v_fmamk_f32 {v(24+i)}, v22, {f2u(float(128*j + i)):#x}, v23")
            A(f"v_fract_f32 {v(24+i)}, {v(24+i)}")
            A(f"v_cos_f32 {v(24+i)}, {v(24+i)}")
        for i in range(8):
            A(f"v_mul_f32 {v(24+i)}, v21, {v(24+i)}")
        for d in range(4):
            A(f"v_cvt_pk_bf16_f32 {v(32+d)}, {v(24+2*d)}, {v(25+2*d)}")
        A(f"ds_write_b128 v19, v[32:35] offset:{4096*j}")
        A("s_waitcnt lgkmcnt(0)")
    A.label(sk)
    A(f"s_cmp_eq_u32 {s(sCol)}, 0")
    A(f"s_cselect_b32 {s(sT)}, 288, {s(sCol)}")
    A(f"s_lshl_b32 {s(sT)}, {s(sT)}, 1")
    A("v_and_b32 v16, 31, v0")
    A("v_lshrrev_b32 v17, 5, v0")
    A("v_lshl_add_u32 v16, v17, 8, v16")
    A("v_mul_u32_u24 v16, 578, v16")
    A(f"v_add_u32 v16, {s(sT)}, v16")
    for tl in range(2):
        for r in range(16):
            n = tl * 16 + r
            A(f"s_mov_b32 {s(sT)}, {(32*tl + 64*(8*(r>>2) + (r&3))) * 578:#x}")
            A(f"buffer_load_ushort {v(FILT+n)}, v16, {s(S_C,4)}, {s(sT)} offen")
            A(f"buffer_load_ushort {v(24+r)}, v16, {s(S_D,4)}, {s(sT)} offen")
        A("s_waitcnt vmcnt(0)")
        for r in range(16):
            A(f"v_lshl_or_b32 {v(FILT+tl*16+r)}, {v(24+r)}, 16, {v(FILT+tl*16+r)}")

def fft_job(A):
    lq = Q(A, "lgkmcnt", 15)
    ACC = 16
    OP = 80
    Z0 = 112
    TBUF = 128
    TW = 144
    TM = 152
    def acc(tl, ri): return ACC + (tl * 2 + ri) * 16
    def op(ri, ks): return OP + (ri * 4 + ks) * 4
    A(f"s_lshl_b32 {s(sT)}, {s(sL)}, 20")
    A(f"s_add_u32 {s(sT)}, {s(sT)}, {FLG + F_X:#x}")
    wait_flags(A, sT, 96, 16, sleep=FSLEEP[0], pre=95)
    A(f"s_mul_i32 {s(sT)}, {s(sL)}, {XSZ}")
    A(f"s_lshl_b32 {s(sT2)}, {s(sCol)}, 13")
    A(f"s_add_u32 {s(sRow)}, {s(sT)}, {s(sT2)}")
    A(f"s_add_u32 {s(sT)}, {s(sRow)}, {XF:#x}")
    A(f"s_mul_i32 {s(sT2)}, {s(S_WAVE)}, 9216")
    A(f"s_add_u32 {s(sT2)}, {s(sT2)}, {D_COL}")
    for i in range(6):
        if i % 4 == 0:
            A(f"s_add_u32 m0, {s(sT2)}, {1024*i}")
            if i: A(f"s_add_u32 {s(sT)}, {s(sT)}, 4096")
        A(f"buffer_load_dwordx4 v6, {s(S_WS,4)}, {s(sT)} offen offset:{1024*(i%4)} sc1 lds")
    A("v_lshrrev_b32 v14, 5, v0")
    A("v_lshlrev_b32 v14, 9, v14")
    A("v_bfe_u32 v15, v0, 2, 2")
    A("v_lshl_add_u32 v14, v15, 7, v14")
    A("v_bfe_u32 v15, v0, 4, 1")
    A("v_lshl_add_u32 v14, v15, 6, v14")
    A("v_and_b32 v15, 3, v0")
    A("v_lshl_add_u32 v14, v15, 3, v14")
    A(f"v_add_u32 v14, {s(sT2)}, v14")
    def direct():
        XR, NX, TR, DD, GS = 80, 15, 140, 148, 152
        A(f"s_lshl_b32 {s(sT)}, {s(sL)}, 20")
        A(f"s_add_u32 {s(sT)}, {s(sT)}, {FLG + F_X + 116*128:#x}")
        wait_flags(A, sT, 1, 152, sleep=FSLEEP[0])
        A(f"v_add_u32 v15, {D_TD}, v6")
        for t_ in range(2):
            A(f"ds_read_b128 {v(TR+4*t_,4)}, v15 offset:{1024*t_}")
        A(f"s_lshl_b32 {s(sT)}, {s(sL)}, 2")
        A(f"s_add_u32 {s(sT)}, {s(sT)}, {s(S_WAVE)}")
        A(f"s_mul_i32 {s(sK+4)}, {s(sT)}, {18*1024}")
        A(f"s_add_u32 {s(sK+4)}, {s(sK+4)}, {X1F:#x}")
        A(f"s_lshl_b32 {s(sT)}, {s(sL)}, 20")
        A(f"s_mul_i32 {s(sT3)}, {s(S_WAVE)}, {18*128}")
        A(f"s_add_u32 {s(sT)}, {s(sT)}, {s(sT3)}")
        A(f"s_add_u32 {s(sT)}, {s(sT)}, {FLG + F_X1 + 124*18*128:#x}")
        wave_wait_flags(A, sT, 18, 152, sleep=FSLEEP[1])
        mark(A, 5, sL, 152)
        vq = Q(A, "vmcnt", 63)
        def ld(t_):
            if t_ and t_ % 4 == 0: A(f"s_add_u32 {s(sK+4)}, {s(sK+4)}, 4096")
            A(f"buffer_load_dwordx4 {v(XR+4*(t_%NX),4)}, v6, {s(S_WS,4)}, {s(sK+4)} offen offset:{1024*(t_%4)} sc1"); vq.push(t_)
        for t_ in range(NX): ld(t_)
        for t_ in range(18):
            vq.wait(t_)
            A(f"s_waitcnt lgkmcnt({1 if t_ < 17 else 0})")
            x = v(XR + 4 * (t_ % NX), 4); tb = TR + 4 * (t_ & 1)
            A(f"v_mfma_f32_16x16x32_bf16 {v(DD,4)}, {x}, {v(tb,4)}, {'0' if t_ == 0 else v(DD,4)}")
            if t_ + 2 < 18: A(f"ds_read_b128 {v(tb,4)}, v15 offset:{1024*(t_+2)}")
            A(f"v_mfma_f32_16x16x32_bf16 {v(GS,4)}, {x}, {x}, {'0' if t_ == 0 else v(GS,4)}")
            if t_ + NX < 18: ld(t_ + NX)
        mark(A, 36, sL, 120)
        A(f"s_lshl_b32 {s(sT)}, {s(S_WAVE)}, 10")
        A(f"s_add_u32 {s(sT)}, {s(sT)}, {D_SC}")
        A(f"v_add_u32 v15, {s(sT)}, v6")
        A("v_lshlrev_b32 v121, 10, v13")
        A("v_lshrrev_b32 v122, 2, v12")
        A("v_lshl_add_u32 v121, v122, 8, v121")
        A("v_and_b32 v122, 3, v12")
        A("v_lshl_add_u32 v121, v122, 2, v121")
        A(f"v_add_u32 v121, {D_SC}, v121")
        A("v_lshl_add_u32 v123, v12, 4, v121")
        A(f"ds_write_b128 v15, {v(DD,4)}")
        A(f"ds_write_b128 v15, {v(GS,4)} offset:4096")
        A(f"s_lshl_b32 {s(sT)}, {s(S_WAVE)}, 5")
        A(f"v_add_u32 v122, {s(sT)}, v121")
        A("v_lshlrev_b32 v125, 6, v13")
        A("v_lshl_add_u32 v125, v12, 1, v125")
        A(f"v_add_u32 v125, {s(sT2)}, v125")
        nb = A.newlabel("dnb")
        A(f"s_cmp_lg_u32 {s(S_WAVE)}, 0")
        A(f"s_cbranch_scc1 {nb}")
        A(f"s_lshl_b32 {s(sT)}, {s(sL)}, 20")
        A(f"s_add_u32 {s(sT)}, {s(sT)}, {FLG + F_X + 96*128:#x}")
        wave_wait_flags(A, sT, 28, 126, sleep=0)
        mark(A, 38, sL, 126)
        for hf in range(2):
            if hf: A("s_mov_b32 exec_hi, 0xffff")
            for c4 in range(4):
                A(f"s_add_u32 {s(sT)}, {s(sRow)}, {XF + 6144 + 8192*c4:#x}")
                A(f"s_mov_b32 m0, {D_COL + 9216*c4 + 6144}")
                A(f"buffer_load_dwordx4 v6, {s(S_WS,4)}, {s(sT)} offen offset:{1024*hf} sc1 lds")
        A("s_mov_b32 exec_hi, -1")
        A("s_waitcnt vmcnt(0)")
        A.label(nb)
        A("s_waitcnt lgkmcnt(0)")
        A("s_barrier")
        mark(A, 37, sL, 126)
        A("ds_read_b32 v126, v121 offset:128")
        A("ds_read_b32 v128, v123 offset:4096")
        A("ds_read2_b32 v[130:131], v122 offset0:0 offset1:4")
        A("s_waitcnt lgkmcnt(1)")
        A(f"v_mul_f32 v126, {f2u(1.0/576):#x}, v126")
        A(f"v_mul_f32 v128, {f2u(1.0/576):#x}, v128")
        A("v_fma_f32 v128, -v126, v126, v128")
        A("v_max_f32 v128, 0, v128")
        for stp in ("", f"v_add_f32 v128, {f2u(1e-5):#x}, v128", "v_sqrt_f32 v128, v128"):
            if stp: A(stp)
            A("v_cvt_pk_bf16_f32 v128, v128, v128")
            A("v_lshlrev_b32 v128, 16, v128")
        A("v_rcp_f32 v128, v128")
        A("s_waitcnt lgkmcnt(0)")
        A("v_mul_f32 v130, v130, v128")
        A("v_mul_f32 v131, v131, v128")
        A("v_cvt_pk_bf16_f32 v130, v130, v131")
        A(f"ds_write_b16 v125, v130 offset:{62*128}")
        A(f"ds_write_b16_d16_hi v125, v130 offset:{62*128 + 32}")
    ring = {"free": [TBUF, TBUF + 4, TBUF + 8, TBUF + 12], "q": [], "at": {}}
    def tq(step, kss=range(4)):
        ring["q"] += [(step, tl, ks, k) for tl in range(2) for ks in kss for k in range(3)]
    def tnext():
        while ring["q"] and ring["free"]:
            key = ring["q"].pop(0); r = ring["free"].pop(0); ring["at"][key] = r
            A(f"ds_read_b128 {v(r,4)}, v6 offset:{D_F64 + 4096*key[1] + 1024*key[2] + 8192*key[3]}"); lq.push(key)
    def trel(key):
        ring["free"].append(ring["at"].pop(key)); tnext()
    def trx(kss):
        for ks in kss:
            for ri in range(2):
                for j in range(2):
                    A(f"ds_read_b64_tr_b16 {v(op(ri,ks)+2*j,2)}, v14 offset:{(16*ks+8*j)*128 + 32*ri}"); lq.push(("x", ks))
    def Z(ri, ks): return Z0 + (ri * 2 + ks) * 4 if ks < 2 else op(ri, ks)
    F32R = [[TBUF, TBUF + 4, TBUF + 8], [TBUF + 12, op(0, 0), op(0, 1)]]
    TW2 = op(1, 0)
    def big(step, tl, kss, src):
        conj = step == 4
        out = []
        for ks in kss:
            kr, ki = (2, 1) if conj else (1, 2)
            for (ri, dat, k, fst, last) in sorted([(0, 0, 0, ks == 0, False), (1, 1, 0, ks == 0, True), (0, 1, kr, False, True), (1, 0, ki, False, True)], key=lambda x: x[2]):
                def it(ri=ri, dat=dat, k=k, fst=fst, last=last, ks=ks):
                    key = (step, tl, ks, k)
                    if step == 1: lq.wait(("x", ks))
                    lq.wait(key)
                    d = v(acc(tl, ri), 16)
                    A(f"v_mfma_f32_32x32x16_bf16 {d}, {v(src(dat, ks),4)}, {v(ring['at'][key],4)}, {'0' if fst else d}")
                    if last: trel(key)
                out.append(it)
        return out
    def small(tl, conj):
        out = []
        for k2 in range(2):
            C, S, N = F32R[k2]
            sr, si = (N, S) if conj else (S, N)
            for (ri, dat, tab, fst) in ((0, 0, C, k2 == 0), (1, 1, C, k2 == 0), (0, 1, sr, False), (1, 0, si, False)):
                def it(ri=ri, dat=dat, tab=tab, fst=fst, k2=k2):
                    lq.wait("f32")
                    d = v(acc(tl, ri), 16); x = v(Z(dat, 2 * tl + k2), 4)
                    o1, o2 = (x, v(tab, 4)) if conj else (v(tab, 4), x)
                    A(f"v_mfma_f32_32x32x16_bf16 {d}, {o1}, {o2}, {'0' if fst else d}")
                out.append(it)
        return out
    def cmul(kind, tl, dbl=True):
        out = []
        bufs = [TW, TW2] if dbl else [TW, TW]
        def rdtw(rq):
            b = bufs[rq & 1]
            off = (D_T1 if kind == 1 else D_T2) + 8192 * tl + 2048 * rq
            A(f"ds_read_b128 {v(b,4)}, v6 offset:{off}"); lq.push(("w", kind, tl, rq))
            A(f"ds_read_b128 {v(b+4,4)}, v6 offset:{off+1024}"); lq.push(("w", kind, tl, rq))
        if kind != 2:
            rdtw(0)
            if dbl: rdtw(1)
        n1, n2 = ("", " neg_lo:[1,0,0] neg_hi:[1,0,0]") if kind == 1 else (" neg_lo:[1,0,0] neg_hi:[1,0,0]", "")
        for rq in range(4):
            b = bufs[rq & 1]
            if kind == 2:
                for r in range(4):
                    f = FILT + tl * 16 + rq * 4 + r
                    out.append(lambda b=b, r=r, f=f: A(f"v_lshlrev_b32 {v(b+r)}, 16, {v(f)}"))
                    out.append(lambda b=b, r=r, f=f: A(f"v_and_b32 {v(b+4+r)}, 0xffff0000, {v(f)}"))
            for p in range(2):
                zr, zi = acc(tl, 0) + 4 * rq + 2 * p, acc(tl, 1) + 4 * rq + 2 * p
                c, sn = v(b + 2 * p, 2), v(b + 4 + 2 * p, 2)
                ks = 2 * tl + (rq >> 1); d = 2 * (rq & 1) + p
                cb, sb = b + 2 * p, b + 4 + 2 * p
                m1, m2 = ("", "-") if kind == 1 else ("-", "")
                def first(zr=zr, cb=cb, rq=rq):
                    lq.wait(("w", kind, tl, rq))
                    A(f"v_mul_f32 {v(TM)}, {v(zr)}, {v(cb)}")
                out.append(first)
                def fm(d, x, y, neg):
                    return f"v_fma_f32 {v(d)}, -{v(x)}, {v(y)}, {v(d)}" if neg else f"v_fmac_f32 {v(d)}, {v(x)}, {v(y)}"
                for x in (f"v_mul_f32 {v(TM+1)}, {v(zr+1)}, {v(cb+1)}",
                          f"v_mul_f32 {v(TM+2)}, {v(zi)}, {v(cb)}",
                          f"v_mul_f32 {v(TM+3)}, {v(zi+1)}, {v(cb+1)}",
                          fm(TM, zi, sb, m1), fm(TM + 1, zi + 1, sb + 1, m1),
                          fm(TM + 2, zr, sb, m2), fm(TM + 3, zr + 1, sb + 1, m2)):
                    out.append(lambda x=x: A(x))
                if p == 1 and kind != 2:
                    nx = rq + (2 if dbl else 1)
                    if nx < 4: out.append(lambda nx=nx: rdtw(nx))
                out.append(lambda ks=ks, d=d: A(f"v_cvt_pk_bf16_f32 {v(Z(0,ks)+d)}, {v(TM)}, {v(TM+1)}"))
                out.append(lambda ks=ks, d=d: A(f"v_cvt_pk_bf16_f32 {v(Z(1,ks)+d)}, {v(TM+2)}, {v(TM+3)}"))
        return out
    def outp(tl):
        out = []
        for ri in range(2):
            for rq in range(4):
                z = acc(tl, ri) + 4 * rq
                out.append(lambda z=z: A(f"v_cvt_pk_bf16_f32 {v(z)}, {v(z)}, {v(z+1)}"))
                out.append(lambda z=z: A(f"v_cvt_pk_bf16_f32 {v(z+1)}, {v(z+2)}, {v(z+3)}"))
                def wr(z=z, ri=ri, rq=rq):
                    A(f"ds_write_b64 v14, {v(z,2)} offset:{32*144*tl + (rq>>1)*64 + ri*32 + (rq&1)*16}"); lq.push("o")
                out.append(wr)
        return out
    def merge(ms, vs, lead=2):
        ms = list(ms); vs = list(vs)
        n = 0
        while ms:
            ms.pop(0)(); n += 1
            if n >= lead:
                k = -(-len(vs) // (len(ms) + 1))
                for _ in range(k): vs.pop(0)()
        for x in vs: x()
    def rdf32():
        for k2 in range(2):
            for k in range(3):
                A(f"ds_read_b128 {v(F32R[k2][k],4)}, v6 offset:{D_F32 + 1024*k2 + 2048*k}"); lq.push("f32")
    tq(1, range(3)); tnext()
    A("s_waitcnt vmcnt(0)")
    trx(range(3))
    merge(big(1, 0, range(3), op), [])
    merge(big(1, 1, range(3), op), [])
    direct()
    lq.reset(); lq.push("img"); lq.push("img")
    trx([3])
    tq(1, [3]); tnext()
    mark(A, 13, sL, 155)
    A("v_and_b32 v14, 31, v0")
    A("v_mul_u32_u24 v14, 144, v14")
    A("v_lshrrev_b32 v15, 5, v0")
    A("v_lshl_add_u32 v14, v15, 3, v14")
    A(f"v_add_u32 v14, {s(sT2)}, v14")
    merge(big(1, 0, [3], op), [])
    merge(big(1, 1, [3], op), cmul(1, 0), lead=4)
    rdf32()
    merge(small(0, False), cmul(1, 1))
    merge(small(1, False), cmul(2, 0))
    merge(small(0, True), cmul(2, 1))
    merge(small(1, True), cmul(3, 0))
    tq(4); tnext()
    merge(big(4, 0, (0, 1), Z), cmul(3, 1))
    ad = ["v_lshrrev_b32 v15, 3, v0", "v_mul_u32_u24 v15, 144, v15", f"v_and_b32 {v(TM)}, 7, v0",
          f"v_lshl_add_u32 v15, {v(TM)}, 4, v15", f"v_add_u32 v15, {s(sT2)}, v15"]
    merge(big(4, 0, (2, 3), Z), [lambda x=x: A(x) for x in ad])
    def ship(tl):
        out = []
        for i in range(4):
            def rd(i=i):
                A(f"ds_read_b128 {v(acc(tl,0)+4*i,4)}, v15 offset:{8*144*(4*tl+i)}"); lq.push(("s", tl, i))
            out.append(rd)
        out += [lambda: None] * 10
        for i in range(4):
            def st(i=i):
                lq.wait(("s", tl, i))
                A(f"buffer_store_dwordx4 {v(acc(tl,0)+4*i,4)}, v6, {s(S_WS,4)}, {s(sT3)} offen offset:{1024*i} sc1")
            out.append(st)
        return out
    A(f"s_add_u32 {s(sT3)}, {s(sRow)}, {YF:#x}")
    merge(big(4, 1, range(4), Z), outp(0) + ship(0) + [lambda: None] * 30)
    mark(A, 14, sL, 155)
    merge([], outp(1))
    A(f"s_lshl_b32 {s(sT)}, {s(sL)}, 20")
    A(f"s_lshl_b32 {s(sT2)}, {s(sRD)}, 7")
    A(f"s_add_u32 {s(sK+6)}, {s(sT)}, {s(sT2)}")
    A(f"s_add_u32 {s(sT3)}, {s(sT3)}, 4096")
    sh = ship(1)
    merge([], sh[:4])
    publish(A, sK + 6, FLG + F_Y, 14)
    merge([], sh[4:])

def fwd_job(A):
    R, X, tmp = 16, 40, 88
    A(f"s_lshl_b32 {s(sT)}, {s(sL)}, 20")
    A(f"s_mul_i32 {s(sT2)}, {s(sHS)}, {18*128}")
    A(f"s_add_u32 {s(sT)}, {s(sT)}, {s(sT2)}")
    A(f"s_add_u32 {s(sT)}, {s(sT)}, {FLG + F_X1:#x}")
    wait_flags(A, sT, 18, 16, sleep=FSLEEP[1])
    mark(A, 3, sL, 16)
    A(f"s_mul_i32 {s(sT)}, {s(sL)}, {XSZ}")
    A(f"s_mul_i32 {s(sT2)}, {s(sHS)}, {16*1152}")
    A(f"s_add_u32 {s(sT)}, {s(sT)}, {s(sT2)}")
    A(f"s_add_u32 {s(sT)}, {s(sT)}, {X1:#x}")
    load_rows(A, R, S_WS, sT, " sc1")
    A("s_waitcnt vmcnt(0)")
    mark(A, 10, sL, 150)
    unpack(A, R, X, 24)
    ln_stats(A, X, tmp)
    E, O = 92, 116
    for i in range(3):
        for m in range(0, 8, 2):
            xa, xb = v(X + 16 * i + m, 2), v(X + 16 * i + 8 + 6 - m, 2)
            A(f"v_pk_add_f32 {v(E+8*i+m,2)}, {xa}, {xb} op_sel:[0,1] op_sel_hi:[1,0]")
            A(f"v_pk_add_f32 {v(O+8*i+m,2)}, {xa}, {xb} op_sel:[0,1] op_sel_hi:[1,0] neg_lo:[0,1] neg_hi:[0,1]")
    for r in range(0, 48, 2):
        A(f"v_pk_mul_f32 {v(E+r,2)}, {v(E+r,2)}, {v(tmp,2)} op_sel_hi:[1,0]")
    for r in range(24):
        A(f"v_cvt_pk_bf16_f32 {v(R+r)}, {v(E+2*r)}, {v(E+2*r+1)}")
    A(f"s_mov_b64 exec, {s(sAct,2)}")
    for i in range(3):
        A(f"ds_write_b128 v7, {v(R+4*i,4)} offset:{192*i}")
        A(f"ds_write_b128 v7, {v(R+12+4*i,4)} offset:{16*ERS + 192*i}")
    A("s_mov_b64 exec, -1")
    A("s_waitcnt lgkmcnt(0)")
    A("s_barrier")
    mark(A, 11, sL, 150)
    F, ACC = 16, 52
    for t in range(9):
        A(f"ds_read_b128 {v(F+4*t,4)}, v8 offset:{64*t}")
    for t in range(9):
        A(f"s_waitcnt lgkmcnt({8-t})")
        for q in range(9):
            d = v(ACC + 4 * q, 4)
            A(f"v_mfma_f32_16x16x32_bf16 {d}, {v(F+4*t,4)}, {T(q,t)}, {'0' if t == 0 else d}")
    A(f"s_mul_i32 {s(sT)}, {s(sL)}, {XSZ}")
    A(f"s_lshl_b32 {s(sT2)}, {s(sHS)}, 6")
    A(f"s_add_u32 {s(sT)}, {s(sT)}, {s(sT2)}")
    A(f"s_lshl_b32 {s(sT2)}, {s(S_WAVE)}, 17")
    A(f"s_add_u32 {s(sT)}, {s(sT)}, {s(sT2)}")
    A(f"s_add_u32 {s(sT)}, {s(sT)}, {XF:#x}")
    A("v_lshrrev_b32 v14, 2, v0")
    A("v_and_b32 v15, 3, v0")
    A("v_lshlrev_b32 v15, 4, v15")
    A(f"s_mul_i32 {s(sT2)}, {s(S_WAVE)}, {16*80}")
    A(f"s_add_u32 {s(sT2)}, {s(sT2)}, {D_XO}")
    A("v_mul_u32_u24 v16, 80, v14")
    A(f"v_add3_u32 v16, v16, v15, {s(sT2)}")
    A("v_lshl_add_u32 v14, v14, 13, v15")
    mark(A, 12, sL, 150)
    for q in range(9):
        z = ACC + 4 * q
        A(f"v_cvt_pk_bf16_f32 {v(z)}, {v(z)}, {v(z+1)}")
        A(f"v_cvt_pk_bf16_f32 {v(z+1)}, {v(z+2)}, {v(z+3)}")
        A(f"ds_write_b64 v9, {v(z,2)} offset:{16*80*q}")
    A("s_waitcnt lgkmcnt(0)")
    A("s_barrier")
    for i in range(5):
        A(f"ds_read_b128 {v(20+4*i,4)}, v16 offset:{64*80*i}")
    sk = A.newlabel("f5")
    for i in range(5):
        if i == 4:
            A(f"s_cmp_ge_u32 {s(S_WAVE)}, 2")
            A(f"s_cbranch_scc1 {sk}")
        A(f"s_waitcnt lgkmcnt({4-i})")
        A(f"buffer_store_dwordx4 {v(20+4*i,4)}, v14, {s(S_WS,4)}, {s(sT)} offen sc1")
        A(f"s_add_u32 {s(sT)}, {s(sT)}, {64*8192}")
    A.label(sk)
    A("s_waitcnt lgkmcnt(0)")
    A(f"s_lshl_b32 {s(sT)}, {s(sL)}, 20")
    A(f"s_lshl_b32 {s(sT2)}, {s(sHS)}, 7")
    A(f"s_add_u32 {s(sT)}, {s(sT)}, {s(sT2)}")
    publish(A, sT, FLG + F_X, 14)

def inv_gather(A, job, hs):
    A("v_lshrrev_b32 v14, 2, v0")
    A("v_lshlrev_b32 v14, 13, v14")
    A("v_and_b32 v15, 3, v0")
    A("v_lshl_add_u32 v14, v15, 4, v14")
    A(f"s_mul_i32 {s(sT)}, {s(sL)}, {XSZ}")
    A(f"s_lshl_b32 {s(sT2)}, {s(hs)}, 6")
    A(f"s_add_u32 {s(sT)}, {s(sT)}, {s(sT2)}")
    A(f"s_min_u32 {s(sT2)}, {s(S_WAVE)}, 1")
    A(f"s_lshl_b32 {s(sT3)}, {s(sT2)}, 17")
    A(f"s_add_u32 {s(sT3)}, {s(sT3)}, {s(sT)}")
    A(f"s_add_u32 {s(sT3)}, {s(sT3)}, {YF + 4*64*8192:#x}")
    A(f"s_lshl_b32 {s(sK+5)}, {s(sT2)}, 10")
    A(f"s_lshl_b32 {s(sT2)}, {s(S_WAVE)}, 17")
    A(f"s_add_u32 {s(sT)}, {s(sT)}, {s(sT2)}")
    A(f"s_add_u32 {s(sT)}, {s(sT)}, {YF:#x}")
    A(f"s_lshl_b32 {s(sT2)}, {s(S_WAVE)}, 10")
    def go():
        for i in range(4):
            A(f"s_add_u32 m0, {s(sT2)}, {D_Y + YB*job + 4096*i}")
            A(f"buffer_load_dwordx4 v14, {s(S_WS,4)}, {s(sT)} offen sc1 lds")
            A(f"s_add_u32 {s(sT)}, {s(sT)}, {64*8192}")
        A(f"s_add_u32 m0, {s(sK+5)}, {D_Y + YB*job + 16384}")
        A(f"buffer_load_dwordx4 v14, {s(S_WS,4)}, {s(sT3)} offen sc1 lds")
    return go

def inv_rows(A):
    A(f"s_mul_i32 {s(sT)}, {s(sL)}, {XSZ}")
    A(f"s_mul_i32 {s(sRow)}, {s(sHS)}, {16*1152}")
    A(f"s_add_u32 {s(sT3)}, {s(sT)}, {s(sRow)}")
    A(f"s_add_u32 {s(sT3)}, {s(sT3)}, {X1:#x}")
    load_rows(A, 128, S_WS, sT3, " sc1")

def mark_first(A, idx, vt):
    import common
    if not common.MARKS: return
    sk = A.newlabel("mf")
    A(f"s_cmp_lg_u32 {s(sJob)}, 0")
    A(f"s_cbranch_scc1 {sk}")
    mark(A, idx, sL, vt)
    A.label(sk)

def inv_job(A, opt):
    R, X, tmp = 128, 40, 88
    mark(A, 10, sL, 154); mark_first(A, 32, 154)
    def y2_load():
        A("v_lshlrev_b32 v92, 7, v0")
        A("v_and_b32 v93, 7, v0")
        A("v_lshlrev_b32 v93, 7, v93")
        A("v_add_u32 v93, 8192, v93")
        A(f"buffer_load_dword v94, v92, {s(S_WS,4)}, {s(sK+7)} offen sc1")
        A(f"buffer_load_dword v95, v93, {s(S_WS,4)}, {s(sK+7)} offen sc1")
    def y2_check():
        A("s_waitcnt vmcnt(0)")
        A("v_min_u32 v94, v94, v95")
        A("v_cmp_eq_u32 vcc, 0, v94")
    sk2 = A.newlabel("g3"); have = A.newlabel("g4"); lp = A.newlabel("g5")
    A(f"s_cmp_eq_u32 {s(sJob)}, 0")
    A(f"s_cbranch_scc1 {sk2}")
    A(f"s_cmp_lg_u32 {s(sStep)}, 0")
    A(f"s_cbranch_scc1 {have}")
    A(f"s_mov_b32 {s(S_CNT)}, 0")
    A.label(lp)
    spin_check(A)
    y2_load(); y2_check()
    A(f"s_cbranch_vccnz {lp}")
    inv_gather(A, 1, sHS)()
    A.label(have)
    inv_rows(A)
    A("s_waitcnt vmcnt(6)")
    A("s_barrier")
    A.label(sk2)
    A(f"s_mul_i32 {s(sT)}, {s(sJob)}, {YB}")
    A(f"v_add_u32 v14, {s(sT)}, v10")
    F, ACC = 16, 52
    for t in range(9):
        for j in range(2):
            A(f"ds_read_b64_tr_b16 {v(F+4*t+2*j,2)}, v14 offset:{(32*t+4*j)*64}")
        if t == 6: A("s_waitcnt lgkmcnt(8)")
    for t in range(9):
        A(f"s_waitcnt lgkmcnt({min(15, 2*(8-t))})")
        for q in range(9):
            d = v(ACC + 4 * q, 4)
            A(f"v_mfma_f32_16x16x32_bf16 {d}, {T(q,t)}, {v(F+4*t,4)}, {'0' if t == 0 else d}")
        if t == 2: y2_load()
    for q in range(9):
        A(f"ds_write_b128 v11, {v(ACC+4*q,4)} offset:{64*q}")
    ng = A.newlabel("g6")
    y2_check()
    A(f"s_mov_b32 {s(sStep)}, 0")
    A(f"s_cbranch_vccnz {ng}")
    A(f"s_cmp_lg_u32 {s(sJob)}, 0")
    A(f"s_cbranch_scc1 {ng}")
    A(f"s_mov_b32 {s(sStep)}, 1")
    A(f"s_add_u32 {s(sK+4)}, {s(sHS)}, 64")
    inv_gather(A, 1, sK + 4)()
    A.label(ng)
    A("s_waitcnt lgkmcnt(0)")
    A("s_barrier")
    mark(A, 11, sL, 154); mark_first(A, 33, 154)
    E, O = 16, 92
    for i in range(3):
        for hf in range(2):
            A(f"ds_read_b128 {v(E+8*i+4*hf,4)}, v1 offset:{384*i + 16*hf}")
            A(f"ds_read_b128 {v(O+8*i+4*hf,4)}, v1 offset:{16*EOS + 384*i + 16*hf}")
    unpack(A, R, X, 24)
    A("s_waitcnt lgkmcnt(0)")
    Y = 116
    for i in range(3):
        for m in range(0, 8, 2):
            e, o = v(E + 8 * i + m, 2), v(O + 8 * i + m, 2)
            A(f"v_pk_add_f32 {v(Y,2)}, {e}, {o} neg_lo:[0,1] neg_hi:[0,1]")
            A(f"v_pk_add_f32 {v(Y+2,2)}, {e}, {o}")
            A(f"v_cvt_pk_bf16_f32 {v(Y)}, {v(Y)}, {v(Y+1)}")
            A(f"v_cvt_pk_bf16_f32 {v(Y+2)}, {v(Y+3)}, {v(Y+2)}")
            A(f"v_and_b32 {v(Y+1)}, 0xffff0000, {v(Y)}")
            A(f"v_lshlrev_b32 {v(Y)}, 16, {v(Y)}")
            A(f"v_and_b32 {v(Y+3)}, 0xffff0000, {v(Y+2)}")
            A(f"v_lshlrev_b32 {v(Y+2)}, 16, {v(Y+2)}")
            xa, xb = X + 16 * i + m, X + 16 * i + 8 + 6 - m
            A(f"v_pk_add_f32 {v(xa,2)}, {v(xa,2)}, {v(Y,2)}")
            A(f"v_pk_add_f32 {v(xb,2)}, {v(xb,2)}, {v(Y+2,2)}")
    for r in range(24):
        A(f"v_cvt_pk_bf16_f32 {v(R+r)}, {v(X+2*r)}, {v(X+2*r+1)}")
    mark(A, 12, sL, 154); mark_first(A, 34, 154)
    last = A.newlabel("ilast"); done = A.newlabel("idone")
    A(f"s_cmp_eq_u32 {s(sL)}, {opt.layers - 1}")
    A(f"s_cbranch_scc1 {last}")
    A(f"s_add_u32 {s(sT)}, {s(sRow)}, {X2:#x}")
    store_rows(A, R, S_WS, sT, " sc1")
    unpack(A, R, X, 24)
    ln_stats(A, X, tmp)
    mark_first(A, 35, 154)
    emit_xn(A, X, tmp, 16, 1)
    A(f"s_branch {done}")
    A.label(last)
    store_rows(A, R, S_B, sRow, "")
    A("s_barrier")
    A.label(done)

FSLEEP = [1, 0]
def dworker(A, opt):
    FSLEEP[0] = opt.dsleep; FSLEEP[1] = opt.osleep
    A("s_mul_i32 s6, s5, 14")
    A("s_add_u32 s6, s6, s4")
    A("s_sub_u32 s7, s6, 18")
    A("s_cmp_eq_u32 s5, 3")
    A(f"s_cselect_b32 {s(sRD)}, s6, s7")
    A(f"s_load_dwordx2 s[80:81], s[0:1], {KA_X}")
    A(f"s_load_dwordx4 s[84:87], s[0:1], {KA_WR}")
    A(f"s_load_dwordx2 s[82:83], s[0:1], {KA_OUT}")
    A(f"s_cmp_lt_u32 {s(sRD)}, 8")
    A(f"s_cselect_b32 {s(sIsF)}, 1, 0")
    A(f"s_cmp_ge_u32 {s(sRD)}, 72")
    A(f"s_cselect_b32 {s(sIsF)}, 2, {s(sIsF)}")
    A(f"s_lshl_b32 {s(sCol)}, {s(sRD)}, 2")
    A(f"s_add_u32 {s(sCol)}, {s(sCol)}, {s(S_WAVE)}")
    A("v_and_b32 v12, 15, v0")
    A("v_lshrrev_b32 v13, 4, v0")
    A("v_lshlrev_b32 v6, 4, v0")
    A(f"v_cmp_gt_u32 {s(sAct,2)}, 12, v12")
    A(f"s_lshl_b32 {s(sT)}, {s(S_WAVE)}, 2")
    A(f"v_add_u32 v14, {s(sT)}, v13")
    A("v_mov_b32 v16, 0x7ff00000")
    A("v_mul_u32_u24 v15, 1152, v14")
    A("v_lshl_add_u32 v2, v12, 4, v15")
    A("v_sub_u32 v17, 47, v12")
    A("v_lshl_add_u32 v3, v17, 4, v15")
    A(f"v_cndmask_b32 v2, v16, v2, {s(sAct,2)}")
    A(f"v_cndmask_b32 v3, v16, v3, {s(sAct,2)}")
    A(f"s_and_b32 {s(sT)}, {s(S_WAVE)}, 1")
    A(f"s_lshl_b32 {s(sT)}, {s(sT)}, 10")
    A(f"s_lshr_b32 {s(sT2)}, {s(S_WAVE)}, 1")
    A(f"s_lshl_b32 {s(sT2)}, {s(sT2)}, 6")
    A(f"s_add_u32 {s(sT)}, {s(sT)}, {s(sT2)}")
    A("v_lshlrev_b32 v18, 4, v13")
    A(f"v_add_u32 v18, {s(sT)}, v18")
    for dst, src in ((4, 12), (5, 17)):
        A(f"v_lshrrev_b32 v19, 2, {v(src)}")
        A(f"v_lshl_add_u32 {v(dst)}, v19, 11, v18")
        A(f"v_and_b32 v19, 3, {v(src)}")
        A(f"v_lshl_add_u32 {v(dst)}, v19, 8, {v(dst)}")
        A(f"v_cndmask_b32 {v(dst)}, v16, {v(dst)}, {s(sAct,2)}")
    A(f"v_mul_u32_u24 v7, {ERS}, v14")
    A("v_lshl_add_u32 v7, v12, 4, v7")
    A(f"v_add_u32 v7, {D_E}, v7")
    A(f"s_lshr_b32 {s(sT2)}, {s(S_WAVE)}, 1")
    A(f"s_mul_i32 {s(sT)}, {s(sT2)}, {16*ERS}")
    A(f"s_add_u32 {s(sT)}, {s(sT)}, {D_E}")
    A(f"v_mul_u32_u24 v8, {ERS}, v12")
    A("v_lshl_add_u32 v8, v13, 4, v8")
    A(f"v_add_u32 v8, {s(sT)}, v8")
    A(f"s_and_b32 {s(sT)}, {s(S_WAVE)}, 1")
    A(f"s_mul_i32 {s(sT3)}, {s(sT)}, {144*80}")
    A(f"s_lshl_b32 {s(sRow)}, {s(sT2)}, 5")
    A(f"s_add_u32 {s(sT3)}, {s(sT3)}, {s(sRow)}")
    A(f"s_add_u32 {s(sT3)}, {s(sT3)}, {D_XO}")
    A("v_mul_u32_u24 v9, 80, v12")
    A("v_lshl_add_u32 v9, v13, 3, v9")
    A(f"v_add_u32 v9, {s(sT3)}, v9")
    A("v_bfe_u32 v19, v0, 2, 2")
    A("v_lshl_add_u32 v10, v13, 3, v19")
    A("v_lshlrev_b32 v10, 6, v10")
    A("v_and_b32 v19, 3, v0")
    A("v_lshl_add_u32 v10, v19, 3, v10")
    A(f"s_add_u32 {s(sRow)}, {s(sRow)}, {D_Y}")
    A(f"v_add_u32 v10, {s(sRow)}, v10")
    A(f"s_mul_i32 {s(sT3)}, {s(sT2)}, {16*EOS}")
    A(f"s_mul_i32 {s(sRow)}, {s(sT)}, 576")
    A(f"s_add_u32 {s(sT3)}, {s(sT3)}, {s(sRow)}")
    A(f"s_add_u32 {s(sT3)}, {s(sT3)}, {D_EO}")
    A(f"v_mul_u32_u24 v11, {EOS}, v12")
    A("v_lshl_add_u32 v11, v13, 4, v11")
    A(f"v_add_u32 v11, {s(sT3)}, v11")
    A(f"v_mul_u32_u24 v1, {EOS}, v14")
    A("v_min_u32 v19, 11, v12")
    A("v_lshl_add_u32 v1, v19, 5, v1")
    A(f"v_add_u32 v1, {D_EO}, v1")
    A("s_waitcnt lgkmcnt(0)")
    build_srd(A, S_A, 80, XSZ)
    build_srd(A, S_B, 82, XSZ)
    build_srd(A, S_C, 84, 2048 * 289 * 2)
    build_srd(A, S_D, 86, 2048 * 289 * 2)
    A(f"s_mov_b32 {s(sL)}, 0")
    A(f"s_mov_b32 {s(sHS)}, {s(sRD)}")
    A(f"s_mul_i32 {s(sT)}, {s(sHS)}, {16*1152}")
    load_rows(A, 16, S_A, sT, "")
    wait_init(A, 88)
    A.label("L_d_ln0")
    A("s_waitcnt vmcnt(0)")
    unpack(A, 16, 40, 24)
    ln_stats(A, 40, 88)
    emit_xn(A, 40, 88, 16, 0)
    A(f"s_add_u32 {s(sHS)}, {s(sHS)}, 74")
    A(f"s_cmp_ge_u32 {s(sHS)}, 128")
    A("s_cbranch_scc1 L_d_ln0done")
    A(f"s_mul_i32 {s(sT)}, {s(sHS)}, {16*1152}")
    load_rows(A, 16, S_A, sT, "")
    A("s_branch L_d_ln0")
    A.label("L_d_ln0done")
    mark(A, 1, None, 16)
    gen_tables(A)
    A("s_barrier")
    A.label("L_d_layer")
    mark(A, 2, sL, 16)
    A(f"s_cmp_eq_u32 {s(sIsF)}, 0")
    A("s_cbranch_scc1 L_d_fft")
    A(f"s_add_u32 {s(sHS)}, {s(sRD)}, 2")
    A(f"s_cmp_lt_u32 {s(sRD)}, 2")
    A(f"s_cselect_b32 {s(sHS)}, {s(sRD)}, {s(sHS)}")
    A(f"s_sub_u32 {s(sT)}, {s(sRD)}, 70")
    A(f"s_cmp_eq_u32 {s(sIsF)}, 2")
    A(f"s_cselect_b32 {s(sHS)}, {s(sT)}, {s(sHS)}")
    A.label("L_d_fwd")
    fwd_job(A)
    A(f"s_add_u32 {s(sHS)}, {s(sHS)}, 10")
    A(f"s_cmp_lt_u32 {s(sHS)}, {128 - 2*ND}")
    A("s_cbranch_scc1 L_d_fwd")
    A(f"s_cmp_eq_u32 {s(sIsF)}, 2")
    A("s_cbranch_scc1 L_d_next")
    A.label("L_d_fft")
    mark(A, 4, sL, 16)
    fft_job(A)
    mark(A, 6, sL, 16)
    A(f"s_cmp_eq_u32 {s(sIsF)}, 0")
    A("s_cbranch_scc1 L_d_toinv")
    publish(A, sK + 6, 128 * 128, 14)
    A("s_branch L_d_next")
    A.label("L_d_toinv")
    A(f"s_sub_u32 {s(sHS)}, {s(sRD)}, 8")
    A(f"s_mov_b32 {s(sJob)}, 0")
    inv_rows(A)
    go = inv_gather(A, 0, sHS)
    A(f"s_lshl_b32 {s(sK+4)}, {s(sL)}, 20")
    A(f"s_add_u32 {s(sK+4)}, {s(sK+4)}, {FLG + F_Y:#x}")
    A(f"s_add_u32 {s(sK+7)}, {s(sK+4)}, {128*128}")
    wait_flags(A, sK + 4, 72, 40, sleep=0, drain=True)
    go()
    mark(A, 7, sL, 40)
    sk = A.newlabel("y2")
    A(f"s_cmp_lg_u32 {s(S_WAVE)}, 3")
    A(f"s_cbranch_scc1 {sk}")
    A(f"s_add_u32 {s(sK+6)}, {s(sK+6)}, {128*128}")
    set_flag(A, sK + 6, 40)
    A("s_waitcnt vmcnt(1)")
    A(f"s_branch {sk}_j")
    A.label(sk)
    A("s_waitcnt vmcnt(0)")
    A.label(sk + "_j")
    A("s_barrier")
    A.label("L_d_inv")
    mark(A, 8, sL, 16)
    inv_job(A, opt)
    A(f"s_add_u32 {s(sHS)}, {s(sHS)}, 64")
    A(f"s_add_u32 {s(sJob)}, {s(sJob)}, 1")
    A(f"s_cmp_lt_u32 {s(sJob)}, 2")
    A("s_cbranch_scc1 L_d_inv")
    A.label("L_d_next")
    mark(A, 9, sL, 16)
    A(f"s_add_u32 {s(sL)}, {s(sL)}, 1")
    A(f"s_cmp_lt_u32 {s(sL)}, {opt.layers}")
    A("s_cbranch_scc1 L_d_layer")
    A("s_branch L_exit")
```
